```python
import torch

def _softmax(x, axis=-1):
    return torch.softmax(x, dim=axis)
def _gelu(x):
    return torch.nn.functional.gelu(x, approximate="tanh")
def _silu(x):
    return torch.nn.functional.silu(x)
def _sigmoid(x):
    return torch.sigmoid(x)
def _layernorm(x, axis=-1, eps=1e-5):
    m = x.mean(dim=axis, keepdim=True)
    v = x.var(dim=axis, keepdim=True, unbiased=False)
    return (x - m) / torch.sqrt(v + eps)
def _scatter_add(tgt, idx, src, axis=0):
    return tgt.clone().index_add_(axis, idx, src)
def _segment_sum(src, seg, n):
    out = torch.zeros((n,) + src.shape[1:], dtype=src.dtype)
    return out.index_add_(0, seg, src)
def _pad(x, pw):
    flat = tuple(v for pair in reversed(pw) for v in pair)
    return torch.nn.functional.pad(x, flat)

kernel_name = 'interleave_layers__mha_block__dense_activation_gelu__prompt'

def setup_inputs():

    _w = (lambda a: (lambda t: t.to(torch.bfloat16) if t.is_floating_point() else t)(torch.as_tensor(a)))
    def _A_setup():
        B, S, D, H = 1, 2048, 448, 16
        return {
            "x": _w((lambda *s: torch.randn(*s, dtype=torch.bfloat16) * 0.05)(B, S, D)),
            "wqkv": _w((lambda *s: torch.randn(*s, dtype=torch.bfloat16) * 0.05)(D, 3 * D)),
            "wo": _w((lambda *s: torch.randn(*s, dtype=torch.bfloat16) * 0.05)(D, D)),
        }
    _A_in = _A_setup()

    def _B_setup():
        B, S, D, F = 1, 2048, 448, 1792
        return {
            "x": _w((lambda *s: torch.randn(*s, dtype=torch.bfloat16) * 0.05)(B, S, D)),
            "w1": _w((lambda *s: torch.randn(*s, dtype=torch.bfloat16) * 0.8)(D, F) * (D ** -0.5)),
            "b1": _w((lambda *s: torch.randn(*s, dtype=torch.bfloat16) * 12.8)(F) * 0.01),
            "w2": _w((lambda *s: torch.randn(*s, dtype=torch.bfloat16) * 0.2)(F, D) * (F ** -0.5)),
            "b2": _w((lambda *s: torch.randn(*s, dtype=torch.bfloat16) * 1.6)(D) * 0.01),
        }
    _B_in = _B_setup()

    return {
        "A_x": _A_in["x"],
        "A_wqkv": _A_in["wqkv"],
        "A_wo": _A_in["wo"],
        "B_x": _B_in["x"],
        "B_w1": _B_in["w1"],
        "B_b1": _B_in["b1"],
        "B_w2": _B_in["w2"],
        "B_b2": _B_in["b2"],
    }

def reference(A_x, A_wqkv, A_wo, B_x, B_w1, B_b1, B_w2, B_b2):
    def _A_ref(x, wqkv, wo):
        B, S, D = x.shape
        H = 16
        Dh = D // H
        qkv = (lambda x, *d: x.permute(*d))((x @ wqkv).reshape(B, S, 3, H, Dh), 2, 0, 3, 1, 4)
        q, k, v = qkv[0], qkv[1], qkv[2]
        scores = torch.einsum("bhqd,bhkd->bhqk", q, k) * (Dh ** -0.5)
        p = _softmax(scores, axis=-1)
        o = torch.einsum("bhqk,bhkd->bhqd", p, v)
        return (lambda x, *d: x.permute(*d))(o, 0, 2, 1, 3).reshape(B, S, D) @ wo

    def _B_ref(x, w1, b1, w2, b2):
        h = torch.einsum("bsd,df->bsf", x, w1) + b1
        h = _gelu(h)
        return torch.einsum("bsf,fd->bsd", h, w2) + b2

    x = A_x
    x = x + _A_ref(_layernorm(x, axis=-1), A_wqkv, A_wo)
    x = x + _B_ref(_layernorm(x, axis=-1), B_w1, B_b1, B_w2, B_b2)
    x = x + _A_ref(_layernorm(x, axis=-1), A_wqkv, A_wo)
    x = x + _B_ref(_layernorm(x, axis=-1), B_w1, B_b1, B_w2, B_b2)
    return x
```

```python
import sys, math, struct

NAME = "interleave_layers__mha_block__dense_activation_gelu__prompt"

OFF_WQKV = 0x000000
OFF_WO   = 0x150000
OFF_W1   = 0x1C0000
OFF_W2   = 0x348000
OFF_CSQ  = 0x4D0000
OFF_CS1  = 0x4D2000
OFF_B1   = 0x4D4000
OFF_B2   = 0x4D6000
OFF_STA  = 0x4D8000
OFF_STB  = 0x518000
OFF_X    = 0x600000
OFF_Q    = 0x800000
OFF_KV   = 0xA00000
OFF_O    = 0xE00000
OFF_H    = 0x1000000
WS_USED  = 0x1800000

def f32(x):
    return struct.unpack("<I", struct.pack("<f", x))[0]

class Asm:
    def __init__(self):
        self.lines = []
    def __call__(self, s):
        self.lines.append("  " + s)
    def label(self, l):
        self.lines.append(l + ":")
    def raw(self, s):
        self.lines.append(s)
    def text(self):
        return "\n".join(self.lines) + "\n"

def vr(b, n):
    return f"v[{b}:{b+n-1}]" if n > 1 else f"v{b}"
def sr(b, n):
    return f"s[{b}:{b+n-1}]" if n > 1 else f"s{b}"

def kernel_header(a, name):
    a.raw(f".globl {name}")
    a.raw(".p2align 8")
    a.raw(f".type {name},@function")
    a.label(name)

def descriptor(name, vgprs, sgprs=96, accum=None):
    if accum is None:
        accum = (vgprs + 3) // 4 * 4
    return f""".p2align 6
.amdhsa_kernel {name}
  .amdhsa_next_free_vgpr {vgprs}
  .amdhsa_next_free_sgpr {sgprs}
  .amdhsa_accum_offset {accum}
  .amdhsa_group_segment_fixed_size 0
  .amdhsa_kernarg_size 88
  .amdhsa_user_sgpr_count 2
  .amdhsa_user_sgpr_kernarg_segment_ptr 1
  .amdhsa_system_sgpr_workgroup_id_x 1
.end_amdhsa_kernel
"""

def ws_srd(a):
    a("s_load_dwordx2 s[4:5], s[0:1], 80")
    a("v_lshrrev_b32 v1, 6, v0")
    a("v_and_b32 v0, 63, v0")
    a("v_readfirstlane_b32 s3, v1")
    a("s_mov_b32 s6, 0x%x" % WS_USED)
    a("s_mov_b32 s7, 0x20000")
    a("s_waitcnt lgkmcnt(0)")
    a("s_and_b32 s5, s5, 0xffff")

def make_srd(a, d, karg_off, nbytes):
    a(f"s_load_dwordx2 s[{d}:{d+1}], s[0:1], {karg_off}")
    a(f"s_mov_b32 s{d+2}, {nbytes}")
    a(f"s_mov_b32 s{d+3}, 0x20000")

OOB = 0x7f000000

def gen_prep(a):
    name = "prep_kernel"
    kernel_header(a, name)
    a("s_cmp_ge_u32 s2, 252")
    a("s_cbranch_scc1 prep_end")
    ws_srd(a)
    a("v_and_b32 v2, 31, v0")
    a("v_lshrrev_b32 v3, 5, v0")
    a("v_lshlrev_b32 v4, 4, v0")
    a("s_cmp_ge_u32 s2, 188")
    a("s_cbranch_scc1 prep_x")
    a("s_cmp_ge_u32 s2, 160")
    a("s_cbranch_scc1 prep_wo")
    a("s_cmp_ge_u32 s2, 104")
    a("s_cbranch_scc1 prep_w2")
    a("s_cmp_ge_u32 s2, 48")
    a("s_cbranch_scc1 prep_w1")

    def wblock(nfr, stride, row_of, dst_of, colsum, masked_second=None):
        base = 16
        for i in range(nfr):
            for j in range(8):
                r = row_of(i) + (j & 3) + 8 * (j >> 2)
                a(f"s_add_u32 s22, s20, {r * stride}")
                voff = "v5"
                if masked_second and masked_second(i) and j >= 4:
                    voff = "v6"
                a(f"buffer_load_ushort v{base + 8 * i + j}, {voff}, s[8:11], s22 offen")
        if colsum:
            a("v_mov_b32 v8, 0")
            a("v_mov_b32 v9, 0x3f803f80")
        for i in range(nfr):
            a(f"s_waitcnt vmcnt({8 * (nfr - 1 - i)})")
            b = base + 8 * i
            for q in range(4):
                a(f"v_lshl_or_b32 v{b + q}, v{b + 2 * q + 1}, 16, v{b + 2 * q}")
            if colsum:
                for q in range(4):
                    a(f"v_dot2_f32_bf16 v8, v{b + q}, v9, v8")
        for i in range(nfr):
            b = base + 8 * i
            a(f"s_add_u32 s22, s21, {dst_of(i)}")
            a(f"buffer_store_dwordx4 v[{b}:{b+3}], v4, s[4:7], s22 offen")

    def colsum_finish(cs_off_sreg):
        a("v_mov_b32 v10, v8")
        a("s_nop 1")
        a("v_permlane32_swap_b32 v8, v10")
        a("s_nop 1")
        a("v_add_f32 v8, v8, v10")
        a("s_lshl_b32 s23, s3, 7")
        a("v_lshlrev_b32 v11, 2, v2")
        a("v_add_u32 v12, s23, v11")
        a("ds_write_b32 v12, v8")
        a("s_waitcnt lgkmcnt(0)")
        a("s_barrier")
        a("ds_read_b32 v12, v11")
        a("ds_read_b32 v13, v11 offset:128")
        a("ds_read_b32 v14, v11 offset:256")
        a("ds_read_b32 v15, v11 offset:384")
        a("s_waitcnt lgkmcnt(0)")
        a("v_add_f32 v12, v12, v13")
        a("v_add_f32 v14, v14, v15")
        a("v_add_f32 v12, v12, v14")
        a("s_cmp_lg_u32 s3, 0")
        a(f"s_cbranch_scc1 {cs_off_sreg[1]}")
        a(f"buffer_store_dword v12, v11, s[4:7], {cs_off_sreg[0]} offen")
        a.label(cs_off_sreg[1])

    make_srd(a, 8, 8, 448 * 1344 * 2)
    a("s_mul_i32 s24, s2, 21846")
    a("s_lshr_b32 s24, s24, 16")
    a("s_mul_i32 s25, s24, 3")
    a("s_sub_u32 s25, s2, s25")
    a("s_mul_i32 s26, s25, 448")
    a("s_mul_i32 s27, s24, 28")
    a("s_add_u32 s26, s26, s27")
    a("s_lshl_b32 s26, s26, 1")
    a("s_mul_i32 s27, s3, %d" % (7 * 16 * 2688))
    a("s_add_u32 s20, s26, s27")
    a("v_mul_u32_u24 v5, %d, v3" % (4 * 2688))
    a("v_lshl_add_u32 v5, v2, 1, v5")
    a("v_mov_b32 v7, 0x%x" % OOB)
    a("v_cmp_gt_u32 vcc, 28, v2")
    a("s_nop 1")
    a("v_cndmask_b32 v5, v7, v5, vcc")
    a("s_mul_i32 s21, s24, 86016")
    a("s_mul_i32 s27, s3, %d" % (7 * 3072))
    a("s_add_u32 s21, s21, s27")
    a("s_lshl_b32 s27, s25, 10")
    a("s_add_u32 s21, s21, s27")
    a("s_add_u32 s21, s21, 0x%x" % OFF_WQKV)
    a("s_lshl_b32 s28, s2, 7")
    a("s_add_u32 s28, s28, 0x%x" % OFF_CSQ)
    a("s_waitcnt lgkmcnt(0)")
    a("s_and_b32 s9, s9, 0xffff")
    wblock(7, 2688, lambda i: 16 * i, lambda i: i * 3072, True)
    colsum_finish(("s28", "prep_q_done"))
    a("s_endpgm")

    a.label("prep_w1")
    make_srd(a, 8, 32, 448 * 1792 * 2)
    make_srd(a, 12, 40, 1792 * 2)
    a("s_sub_u32 s24, s2, 48")
    a("s_lshl_b32 s26, s24, 6")
    a("s_mul_i32 s27, s3, %d" % (7 * 16 * 3584))
    a("s_add_u32 s20, s26, s27")
    a("v_mul_u32_u24 v5, %d, v3" % (4 * 3584))
    a("v_lshl_add_u32 v5, v2, 1, v5")
    a("s_lshr_b32 s25, s24, 2")
    a("s_mul_i32 s21, s25, %d" % (28 * 4096))
    a("s_mul_i32 s27, s3, %d" % (7 * 4096))
    a("s_add_u32 s21, s21, s27")
    a("s_and_b32 s27, s24, 3")
    a("s_lshl_b32 s27, s27, 10")
    a("s_add_u32 s21, s21, s27")
    a("s_add_u32 s21, s21, 0x%x" % OFF_W1)
    a("s_lshl_b32 s28, s24, 7")
    a("s_add_u32 s29, s28, 0x%x" % OFF_B1)
    a("s_add_u32 s28, s28, 0x%x" % OFF_CS1)
    a("s_waitcnt lgkmcnt(0)")
    a("s_and_b32 s9, s9, 0xffff")
    a("s_and_b32 s13, s13, 0xffff")
    a("v_lshlrev_b32 v7, 1, v2")
    a("buffer_load_ushort v6, v7, s[12:15], s26 offen")
    a("v_lshlrev_b32 v7, 2, v2")
    a("s_waitcnt vmcnt(0)")
    a("v_lshlrev_b32 v6, 16, v6")
    a("buffer_store_dword v6, v7, s[4:7], s29 offen")
    wblock(7, 3584, lambda i: 16 * i, lambda i: i * 4096, True)
    colsum_finish(("s28", "prep_1_done"))
    a("s_endpgm")

    a.label("prep_w2")
    make_srd(a, 8, 48, 1792 * 448 * 2)
    make_srd(a, 12, 56, 448 * 2)
    a("s_sub_u32 s24, s2, 104")
    a("s_lshr_b32 s25, s24, 2")
    a("s_and_b32 s24, s24, 3")
    a("s_mul_i32 s27, s24, 28")
    a("s_mul_i32 s29, s3, 7")
    a("s_add_u32 s27, s27, s29")
    a("s_lshl_b32 s26, s25, 6")
    a("s_mul_i32 s29, s27, %d" % (16 * 896))
    a("s_add_u32 s20, s26, s29")
    a("v_mul_u32_u24 v5, %d, v3" % (4 * 896))
    a("v_lshl_add_u32 v5, v2, 1, v5")
    a("s_mul_i32 s21, s25, %d" % (112 * 1024))
    a("s_lshl_b32 s29, s27, 10")
    a("s_add_u32 s21, s21, s29")
    a("s_add_u32 s21, s21, 0x%x" % OFF_W2)
    a("s_lshl_b32 s29, s25, 7")
    a("s_add_u32 s29, s29, 0x%x" % OFF_B2)
    a("s_waitcnt lgkmcnt(0)")
    a("s_and_b32 s9, s9, 0xffff")
    a("s_and_b32 s13, s13, 0xffff")
    a("v_lshlrev_b32 v7, 1, v2")
    a("buffer_load_ushort v6, v7, s[12:15], s26 offen")
    a("v_lshlrev_b32 v7, 2, v2")
    a("s_waitcnt vmcnt(0)")
    a("v_lshlrev_b32 v6, 16, v6")
    a("buffer_store_dword v6, v7, s[4:7], s29 offen")
    wblock(7, 896, lambda i: 16 * i, lambda i: i * 1024, False)
    a("s_endpgm")

    a.label("prep_wo")
    make_srd(a, 8, 16, 448 * 448 * 2)
    a("s_sub_u32 s24, s2, 160")
    a("s_lshr_b32 s25, s24, 1")
    a("s_and_b32 s24, s24, 1")
    a("s_lshl_b32 s27, s24, 4")
    a("s_lshl_b32 s29, s3, 2")
    a("s_add_u32 s27, s27, s29")
    a("s_mul_i32 s29, s27, %d" % (14 * 896))
    a("s_lshl_b32 s26, s25, 6")
    a("s_add_u32 s20, s26, s29")
    a("v_mul_u32_u24 v5, %d, v3" % (4 * 896))
    a("v_lshl_add_u32 v5, v2, 1, v5")
    a("v_mov_b32 v7, 0x%x" % OOB)
    a("v_cmp_eq_u32 vcc, 0, v3")
    a("s_nop 1")
    a("v_cndmask_b32 v6, v7, v5, vcc")
    a("s_mul_i32 s21, s25, %d" % (32 * 1024))
    a("s_lshl_b32 s29, s27, 10")
    a("s_add_u32 s21, s21, s29")
    a("s_add_u32 s21, s21, 0x%x" % OFF_WO)
    a("s_waitcnt lgkmcnt(0)")
    a("s_and_b32 s9, s9, 0xffff")
    wblock(4, 896, lambda i: [0, 16, 28, 44][i], lambda i: i * 1024, False, masked_second=lambda i: i & 1)
    a("s_endpgm")

    a.label("prep_x")
    make_srd(a, 8, 0, 2048 * 448 * 2)
    a("s_sub_u32 s24, s2, 188")
    a("v_mul_u32_u24 v5, 896, v2")
    a("v_lshl_add_u32 v5, v3, 3, v5")
    a("s_mul_i32 s20, s24, %d" % (32 * 896))
    a("s_mul_i32 s27, s3, %d" % (7 * 32))
    a("s_add_u32 s20, s20, s27")
    a("s_mul_i32 s21, s24, %d" % (28 * 1024))
    a("s_mul_i32 s27, s3, %d" % (7 * 1024))
    a("s_add_u32 s21, s21, s27")
    a("s_add_u32 s21, s21, 0x%x" % OFF_X)
    a("s_waitcnt lgkmcnt(0)")
    a("s_and_b32 s9, s9, 0xffff")
    for i in range(7):
        a(f"buffer_load_dwordx2 v[{16+4*i}:{17+4*i}], v5, s[8:11], s20 offen offset:{32*i}")
        a(f"buffer_load_dwordx2 v[{18+4*i}:{19+4*i}], v5, s[8:11], s20 offen offset:{32*i+16}")
    a("v_mov_b32 v8, 0")
    a("v_mov_b32 v9, 0")
    a("v_mov_b32 v10, 0x3f803f80")
    a("s_waitcnt vmcnt(0)")
    for i in range(7):
        a(f"s_add_u32 s22, s21, {i*1024}")
        a(f"buffer_store_dwordx4 v[{16+4*i}:{19+4*i}], v4, s[4:7], s22 offen")
    for i in range(28):
        a(f"v_dot2_f32_bf16 v8, v{16+i}, v10, v8")
        a(f"v_dot2_f32_bf16 v9, v{16+i}, v{16+i}, v9")
    a("v_mov_b32 v12, v8")
    a("v_mov_b32 v13, v9")
    a("s_nop 1")
    a("v_permlane32_swap_b32 v8, v12")
    a("v_permlane32_swap_b32 v9, v13")
    a("s_nop 1")
    a("v_add_f32 v8, v8, v12")
    a("v_add_f32 v9, v9, v13")
    a("v_cmp_eq_u32 vcc, 0, v3")
    a("s_nop 1")
    a("v_cndmask_b32 v8, 0, v8, vcc")
    a("v_cndmask_b32 v9, 0, v9, vcc")
    a("v_lshlrev_b32 v11, 3, v2")
    a("v_lshl_add_u32 v11, v3, 16, v11")
    a("s_lshl_b32 s22, s24, 8")
    a("s_lshl_b32 s27, s3, 14")
    a("s_add_u32 s22, s22, s27")
    a("s_add_u32 s22, s22, 0x%x" % OFF_STA)
    a("buffer_store_dwordx2 v[8:9], v11, s[4:7], s22 offen")
    a("v_mov_b32 v14, 0")
    a("v_mov_b32 v15, 0")
    a("s_add_u32 s22, s22, 0x%x" % (8 * 16384))
    a("buffer_store_dwordx2 v[14:15], v11, s[4:7], s22 offen")
    a.label("prep_end")
    a("s_endpgm")
    return descriptor(name, 80)

def stats_issue(a, vbase, s_tt, st_off, vtmp, stmp):
    a(f"v_mul_u32_u24 v{vtmp}, {7*16384}, v3")
    a(f"v_lshl_add_u32 v{vtmp}, v2, 3, v{vtmp}")
    a(f"s_lshl_b32 s{stmp}, s{s_tt}, 8")
    a(f"s_add_u32 s{stmp}, s{stmp}, 0x%x" % st_off)
    for i in range(7):
        a(f"buffer_load_dwordx2 v[{vbase+2*i}:{vbase+2*i+1}], v{vtmp}, s[4:7], s{stmp} offen")
        if i < 6:
            a(f"s_add_u32 s{stmp}, s{stmp}, 16384")

def stats_finish(a, vbase, v_nmean, v_rstd, t0, t1):
    for i in range(1, 7):
        a(f"v_add_f32 v{vbase}, v{vbase}, v{vbase+2*i}")
        a(f"v_add_f32 v{vbase+1}, v{vbase+1}, v{vbase+2*i+1}")
    a(f"v_mov_b32 v{t0}, v{vbase}")
    a(f"v_mov_b32 v{t1}, v{vbase+1}")
    a("s_nop 1")
    a(f"v_permlane32_swap_b32 v{vbase}, v{t0}")
    a(f"v_permlane32_swap_b32 v{vbase+1}, v{t1}")
    a("s_nop 1")
    a(f"v_add_f32 v{vbase}, v{vbase}, v{t0}")
    a(f"v_add_f32 v{vbase+1}, v{vbase+1}, v{t1}")
    a(f"v_mul_f32 v{v_nmean}, 0x%x, v{vbase}" % f32(-1.0 / 448))
    a(f"v_mul_f32 v{t0}, 0x%x, v{vbase+1}" % f32(1.0 / 448))
    a(f"v_fma_f32 v{t0}, -v{v_nmean}, v{v_nmean}, v{t0}")
    a(f"v_max_f32 v{t0}, 0, v{t0}")
    a(f"v_add_f32 v{t0}, 0x%x, v{t0}" % f32(1e-5))
    a(f"v_rsq_f32 v{v_rstd}, v{t0}")
    a("s_nop 0")

def gen_gemm_a(a, kind):
    NT = 3 if kind == "qkv" else 4
    name = kind + "_kernel"
    ngrid = 256 if kind == "qkv" else 224
    kernel_header(a, name)
    a(f"s_cmp_ge_u32 s2, {ngrid}")
    a(f"s_cbranch_scc1 {kind}_end")
    ws_srd(a)
    a("v_and_b32 v2, 31, v0")
    a("v_lshrrev_b32 v3, 5, v0")
    a("v_lshlrev_b32 v4, 4, v0")
    a("s_and_b32 s20, s2, 7")
    a("s_lshr_b32 s21, s2, 3")
    a("s_and_b32 s22, s21, 1")
    a("s_lshl_b32 s20, s20, 1")
    a("s_add_u32 s20, s20, s22")
    a("s_lshr_b32 s21, s21, 1")
    a("s_lshl_b32 s20, s20, 2")
    a("s_add_u32 s20, s20, s3")
    XF = 0
    WF = 112
    ACC = 24
    ST = ACC + 16 * NT
    CS = ST + 16
    TMP = CS + (36 if kind == "qkv" else 128)
    def ar(b, n): return f"a[{b}:{b+n-1}]"
    a("v_add_u32 v8, 0x10000, v4")
    stats_issue(a, ST, 20, OFF_STA if kind == "qkv" else OFF_STB, 5, 23)
    a("v_lshlrev_b32 v6, 4, v3")
    if kind == "qkv":
        a("s_mul_i32 s23, s21, %d" % (3 * 128))
        a("s_add_u32 s23, s23, 0x%x" % OFF_CSQ)
        for p in range(2):
            for g in range(4):
                a(f"buffer_load_dwordx4 v[{CS+16*p+4*g}:{CS+16*p+4*g+3}], v6, s[4:7], s23 offen offset:{p*128+g*32}")
        a("v_lshlrev_b32 v7, 2, v2")
        a(f"buffer_load_dword v{CS+32}, v7, s[4:7], s23 offen offset:256")
    else:
        a("s_lshl_b32 s23, s21, 9")
        a("s_add_u32 s24, s23, 0x%x" % OFF_B1)
        a("s_add_u32 s23, s23, 0x%x" % OFF_CS1)
        for nt in range(4):
            for g in range(4):
                a(f"buffer_load_dwordx4 v[{CS+16*nt+4*g}:{CS+16*nt+4*g+3}], v6, s[4:7], s23 offen offset:{nt*128+g*32}")
        for nt in range(4):
            for g in range(4):
                a(f"buffer_load_dwordx4 v[{CS+64+16*nt+4*g}:{CS+64+16*nt+4*g+3}], v6, s[4:7], s24 offen offset:{nt*128+g*32}")
    a("s_mul_i32 s25, s20, %d" % (28 * 1024))
    a("s_add_u32 s25, s25, 0x%x" % OFF_X)
    a("s_mul_i32 s26, s21, %d" % (28 * NT * 1024))
    a("s_mul_i32 s27, s3, %d" % (NT * 1024))
    a("s_add_u32 s26, s26, s27")
    a("s_add_u32 s26, s26, 0x%x" % (OFF_WQKV if kind == "qkv" else OFF_W1))
    for c in range(7):
        a("s_mov_b32 m0, s27")
        for k in range(4):
            ks = 4 * c + k
            a(f"buffer_load_dwordx4 {ar(XF+4*ks,4)}, v4, s[4:7], s25 offen offset:{k*1024}")
        for p in range(NT):
            a(f"buffer_load_dwordx4 v4, s[4:7], s26 offen offset:{p*1024} lds")
        if c < 6:
            a("s_add_u32 s25, s25, 4096")
            a(f"s_add_u32 s26, s26, {4*NT*1024}")
            a(f"s_add_u32 s27, s27, {4*NT*1024}")
    for r in range(16 * NT):
        a(f"v_mov_b32 v{ACC+r}, 0")
    per = 4 + NT
    for c in range(7):
        a(f"s_waitcnt vmcnt({(6-c)*per})")
        a("s_barrier")
        for k in range(4):
            ks = 4 * c + k
            for p in range(NT):
                off = (ks * NT + p) * 1024
                areg = "v4" if off < 65536 else "v8"
                a(f"ds_read_b128 {ar(WF+(k*NT+p)*4,4)}, {areg} offset:{off & 0xffff}")
        for k in range(4):
            ks = 4 * c + k
            a(f"s_waitcnt lgkmcnt({(3-k)*NT})")
            for p in range(NT):
                w = ar(WF + (k * NT + p) * 4, 4)
                x = ar(XF + 4 * ks, 4)
                acc = vr(ACC + 16 * p, 16)
                if kind == "qkv" and p == 2:
                    a(f"v_mfma_f32_32x32x16_bf16 {acc}, {x}, {w}, {acc}")
                else:
                    a(f"v_mfma_f32_32x32x16_bf16 {acc}, {w}, {x}, {acc}")
    NM, RS = 10, 12
    stats_finish(a, ST, NM, RS, 14, 15)
    if kind == "qkv":
        qscale = (28 ** -0.5) * math.log2(math.e)
        a("v_mul_f32 v14, 0x%x, v%d" % (f32(qscale), RS))
        a(f"v_mul_f32 v15, v{NM}, v{RS}")
        a("s_lshl_b32 s27, s3, 8")
        a("s_add_u32 s27, s27, 86016")
        a("v_lshlrev_b32 v7, 2, v2")
        a("v_add_u32 v7, s27, v7")
        a(f"ds_write_b32 v7, v{RS}")
        a("ds_write_b32 v7, v15 offset:128")
        a("v_add_u32 v7, s27, v6")
        a("s_waitcnt lgkmcnt(0)")
        TA, TB = TMP, TMP + 16
        a("s_nop 7")
        for g in range(4):
            a(f"ds_read_b128 v[{TA+4*g}:{TA+4*g+3}], v7 offset:{32*g}")
            a(f"ds_read_b128 v[{TB+4*g}:{TB+4*g+3}], v7 offset:{128+32*g}")
        a("s_nop 7")
        for p in range(2):
            acc = ACC + 16 * p
            cs = CS + 16 * p
            for r in range(0, 16, 2):
                a(f"v_pk_fma_f32 v[{acc+r}:{acc+r+1}], v[{cs+r}:{cs+r+1}], v[{NM}:{NM+1}], v[{acc+r}:{acc+r+1}] op_sel_hi:[1,0,1]")
            sc = 14 if p == 0 else RS
            for r in range(0, 16, 2):
                a(f"v_pk_mul_f32 v[{acc+r}:{acc+r+1}], v[{acc+r}:{acc+r+1}], v[{sc}:{sc+1}] op_sel_hi:[1,0]")
            for r in range(8):
                a(f"v_cvt_pk_bf16_f32 v{acc+r}, v{acc+2*r}, v{acc+2*r+1}")
        a("s_lshl_b32 s23, s21, 6")
        a("s_add_u32 s23, s23, s20")
        a("s_lshl_b32 s24, s23, 11")
        a("s_add_u32 s24, s24, 0x%x" % OFF_Q)
        a("s_lshl_b32 s23, s23, 12")
        a("s_add_u32 s23, s23, 0x%x" % OFF_KV)
        a(f"buffer_store_dwordx4 v[{ACC}:{ACC+3}], v4, s[4:7], s24 offen")
        a(f"buffer_store_dwordx4 v[{ACC+4}:{ACC+7}], v4, s[4:7], s24 offen offset:1024")
        a(f"buffer_store_dwordx4 v[{ACC+16}:{ACC+19}], v4, s[4:7], s23 offen")
        a(f"buffer_store_dwordx4 v[{ACC+20}:{ACC+23}], v4, s[4:7], s23 offen offset:1024")
        a("v_cmp_eq_u32 vcc, 28, v2")
        a("v_mov_b32 v9, 1.0")
        a("s_nop 0")
        a("v_cndmask_b32 v9, 0, v9, vcc")
        a("s_waitcnt lgkmcnt(0)")
        acc = ACC + 32
        for r in range(16):
            a(f"v_fma_f32 v{TB+r}, v{TB+r}, v{CS+32}, v9")
        for r in range(16):
            a(f"v_fma_f32 v{acc+r}, v{acc+r}, v{TA+r}, v{TB+r}")
        for r in range(8):
            a(f"v_cvt_pk_bf16_f32 v{acc+r}, v{acc+2*r}, v{acc+2*r+1}")
        a(f"buffer_store_dwordx4 v[{acc}:{acc+3}], v4, s[4:7], s23 offen offset:2048")
        a(f"buffer_store_dwordx4 v[{acc+4}:{acc+7}], v4, s[4:7], s23 offen offset:3072")
    else:
        c1 = -2.0 * math.sqrt(2.0 / math.pi) * math.log2(math.e)
        c2 = c1 * 0.044715
        a(f"v_mul_f32 v14, v{NM}, v{RS}")
        a("s_mov_b32 s40, 0x%x" % f32(c1))
        a("s_mov_b32 s41, 0x%x" % f32(c1))
        a("s_mov_b32 s42, 0x%x" % f32(c2))
        a("s_mov_b32 s43, 0x%x" % f32(c2))
        a("v_mov_b32 v16, s40")
        a("v_mov_b32 v17, s40")
        a("s_mul_i32 s23, s20, 112")
        a("s_lshl_b32 s24, s21, 3")
        a("s_add_u32 s23, s23, s24")
        a("s_lshl_b32 s23, s23, 10")
        a("s_add_u32 s23, s23, 0x%x" % OFF_H)
        T0 = TMP
        for nt in range(4):
            acc = ACC + 16 * nt
            cs = CS + 16 * nt
            bb = CS + 64 + 16 * nt
            for r in range(0, 16, 2):
                a(f"v_pk_fma_f32 v[{bb+r}:{bb+r+1}], v[{cs+r}:{cs+r+1}], v[14:15], v[{bb+r}:{bb+r+1}] op_sel_hi:[1,0,1]")
            for r in range(0, 16, 2):
                a(f"v_pk_fma_f32 v[{acc+r}:{acc+r+1}], v[{acc+r}:{acc+r+1}], v[{RS}:{RS+1}], v[{bb+r}:{bb+r+1}] op_sel_hi:[1,0,1]")
            for r in range(0, 16, 2):
                a(f"v_pk_mul_f32 v[{T0+r}:{T0+r+1}], v[{acc+r}:{acc+r+1}], v[{acc+r}:{acc+r+1}]")
            for r in range(0, 16, 2):
                a(f"v_pk_fma_f32 v[{T0+r}:{T0+r+1}], v[{T0+r}:{T0+r+1}], s[42:43], v[16:17]")
            for r in range(0, 16, 2):
                a(f"v_pk_mul_f32 v[{T0+r}:{T0+r+1}], v[{T0+r}:{T0+r+1}], v[{acc+r}:{acc+r+1}]")
            for r in range(16):
                a(f"v_exp_f32 v{T0+r}, v{T0+r}")
            for r in range(0, 16, 2):
                a(f"v_pk_add_f32 v[{T0+r}:{T0+r+1}], v[{T0+r}:{T0+r+1}], 1.0 op_sel_hi:[1,0]")
            for r in range(16):
                a(f"v_rcp_f32 v{T0+r}, v{T0+r}")
            for r in range(0, 16, 2):
                a(f"v_pk_mul_f32 v[{acc+r}:{acc+r+1}], v[{acc+r}:{acc+r+1}], v[{T0+r}:{T0+r+1}]")
            for r in range(8):
                a(f"v_cvt_pk_bf16_f32 v{acc+r}, v{acc+2*r}, v{acc+2*r+1}")
            if nt == 2:
                a("s_add_u32 s23, s23, 4096")
            o = (nt & 1) * 2048
            a(f"buffer_store_dwordx4 v[{acc}:{acc+3}], v4, s[4:7], s23 offen offset:{o}")
            a(f"buffer_store_dwordx4 v[{acc+4}:{acc+7}], v4, s[4:7], s23 offen offset:{o+1024}")
    a.label(f"{kind}_end")
    a("s_endpgm")
    nv = (TMP + (32 if kind == 'qkv' else 16) + 3) // 4 * 4
    return descriptor(name, nv + 112 + 16 * NT, accum=nv), nv

def gen_gemm_b(a, kind):
    KS = 32 if kind == "wo" else 112
    KW = KS // 4
    name = kind + "_kernel"
    kernel_header(a, name)
    a("s_cmp_ge_u32 s2, 224")
    a(f"s_cbranch_scc1 {kind}_end")
    if kind == "ffn2b":
        make_srd(a, 8, 64, 2048 * 448 * 2)
    ws_srd(a)
    if kind == "ffn2b":
        a("s_and_b32 s9, s9, 0xffff")
    a("v_and_b32 v2, 31, v0")
    a("v_lshrrev_b32 v3, 5, v0")
    a("v_lshlrev_b32 v4, 4, v0")
    a("s_and_b32 s20, s2, 7")
    a("s_lshr_b32 s21, s2, 3")
    a("s_and_b32 s22, s21, 3")
    a("s_lshl_b32 s20, s20, 2")
    a("s_add_u32 s20, s20, s22")
    a("s_lshr_b32 s21, s21, 2")
    a("s_lshr_b32 s22, s3, 1")
    a("s_and_b32 s23, s3, 1")
    a("s_lshl_b32 s30, s20, 1")
    a("s_add_u32 s30, s30, s22")
    a("s_lshl_b32 s31, s21, 1")
    a("s_add_u32 s31, s31, s23")
    RES = 8
    BIA = 16
    ACC = 32
    FR = 0
    TV = 96
    def ar(b, n): return f"a[{b}:{b+n-1}]"
    a("s_mul_i32 s32, s30, 28")
    a("s_lshl_b32 s33, s31, 1")
    a("s_add_u32 s32, s32, s33")
    a("s_lshl_b32 s32, s32, 10")
    a("s_add_u32 s32, s32, 0x%x" % OFF_X)
    a(f"buffer_load_dwordx4 v[{RES}:{RES+3}], v4, s[4:7], s32 offen")
    a(f"buffer_load_dwordx4 v[{RES+4}:{RES+7}], v4, s[4:7], s32 offen offset:1024")
    if kind != "wo":
        a("v_lshlrev_b32 v6, 4, v3")
        a("s_lshl_b32 s33, s31, 7")
        a("s_add_u32 s33, s33, 0x%x" % OFF_B2)
        for g in range(4):
            a(f"buffer_load_dwordx4 v[{BIA+4*g}:{BIA+4*g+3}], v6, s[4:7], s33 offen offset:{g*32}")
    src = OFF_O if kind == "wo" else OFF_H
    wof = OFF_WO if kind == "wo" else OFF_W2
    a("s_mul_i32 s28, s3, %d" % (KW * 1024))
    a("s_mul_i32 s24, s20, %d" % (2 * KS * 1024))
    a("s_add_u32 s24, s24, s28")
    a("s_add_u32 s24, s24, 0x%x" % src)
    a("s_add_u32 s25, s24, %d" % (KS * 1024))
    a("s_mul_i32 s26, s21, %d" % (2 * KS * 1024))
    a("s_add_u32 s26, s26, s28")
    a("s_add_u32 s26, s26, 0x%x" % wof)
    a("s_add_u32 s27, s26, %d" % (KS * 1024))
    R = 8 if KW == 8 else 12
    def issue(ks):
        slot = ks % R
        o = (ks % 4) * 1024
        b = FR + slot * 16
        a(f"buffer_load_dwordx4 {ar(b,4)}, v4, s[4:7], s24 offen offset:{o}")
        a(f"buffer_load_dwordx4 {ar(b+4,4)}, v4, s[4:7], s25 offen offset:{o}")
        a(f"buffer_load_dwordx4 {ar(b+8,4)}, v4, s[4:7], s26 offen offset:{o}")
        a(f"buffer_load_dwordx4 {ar(b+12,4)}, v4, s[4:7], s27 offen offset:{o}")
        if ks % 4 == 3:
            for s in (24, 25, 26, 27):
                a(f"s_add_u32 s{s}, s{s}, 4096")
    for ks in range(min(R, KW)):
        issue(ks)
    for r in range(64):
        a(f"v_mov_b32 v{ACC+r}, 0")
    for ks in range(KW):
        inflight_after = min(KW, ks + R) - (ks + 1)
        a(f"s_waitcnt vmcnt({4*inflight_after if 4*inflight_after < 64 else 63})")
        b = FR + (ks % R) * 16
        for ti in range(2):
            for ni in range(2):
                acc = vr(ACC + 16 * (2 * ti + ni), 16)
                a(f"v_mfma_f32_32x32x16_bf16 {acc}, {ar(b+8+4*ni,4)}, {ar(b+4*ti,4)}, {acc}")
        if ks + R < KW:
            issue(ks + R)
    a("s_nop 7")
    a("s_nop 7")
    for w in range(4):
        a(f"s_cmp_eq_u32 s3, {w}")
        a(f"s_cbranch_scc1 {kind}_red{w}")
    for w in range(4):
        a.label(f"{kind}_red{w}")
        for d in range(4):
            if d == w: continue
            slot = (w - d - 1) & 3
            for q in range(4):
                b = ACC + 16 * d + 4 * q
                a(f"ds_write_b128 v4, v[{b}:{b+3}] offset:{(d*3+slot)*4096 + q*1024}")
        if w != 0:
            a("s_waitcnt lgkmcnt(0)")
            for r in range(16):
                a(f"v_mov_b32 v{ACC+r}, v{ACC+16*w+r}")
        if w != 3:
            a(f"s_branch {kind}_redj")
    a.label(f"{kind}_redj")
    a("s_mul_i32 s33, s3, %d" % (3 * 4096))
    a("v_add_u32 v5, s33, v4")
    a("s_waitcnt lgkmcnt(0)")
    a("s_barrier")
    T = TV
    for sl in range(3):
        for q in range(4):
            a(f"ds_read_b128 v[{T+16*sl+4*q}:{T+16*sl+4*q+3}], v5 offset:{sl*4096+q*1024}")
    for sl in range(3):
        a(f"s_waitcnt lgkmcnt({(2-sl)*4})")
        for r in range(0, 16, 2):
            a(f"v_pk_add_f32 v[{ACC+r}:{ACC+r+1}], v[{ACC+r}:{ACC+r+1}], v[{T+16*sl+r}:{T+16*sl+r+1}]")
    a("s_waitcnt vmcnt(0)")
    if kind != "wo":
        for r in range(0, 16, 2):
            a(f"v_pk_add_f32 v[{ACC+r}:{ACC+r+1}], v[{ACC+r}:{ACC+r+1}], v[{BIA+r}:{BIA+r+1}]")
    for q in range(8):
        a(f"v_lshlrev_b32 v{T+2*q}, 16, v{RES+q}")
        a(f"v_and_b32 v{T+2*q+1}, 0xffff0000, v{RES+q}")
    for r in range(0, 16, 2):
        a(f"v_pk_add_f32 v[{ACC+r}:{ACC+r+1}], v[{ACC+r}:{ACC+r+1}], v[{T+r}:{T+r+1}]")
    if kind != "ffn2b":
        a(f"v_pk_add_f32 v[{T}:{T+1}], v[{ACC}:{ACC+1}], v[{ACC+2}:{ACC+3}]")
        a(f"v_pk_mul_f32 v[{T+2}:{T+3}], v[{ACC}:{ACC+1}], v[{ACC}:{ACC+1}]")
        a(f"v_pk_fma_f32 v[{T+2}:{T+3}], v[{ACC+2}:{ACC+3}], v[{ACC+2}:{ACC+3}], v[{T+2}:{T+3}]")
        for r in range(4, 16, 2):
            a(f"v_pk_add_f32 v[{T}:{T+1}], v[{T}:{T+1}], v[{ACC+r}:{ACC+r+1}]")
            a(f"v_pk_fma_f32 v[{T+2}:{T+3}], v[{ACC+r}:{ACC+r+1}], v[{ACC+r}:{ACC+r+1}], v[{T+2}:{T+3}]")
        a(f"v_add_f32 v{T+4}, v{T}, v{T+1}")
        a(f"v_add_f32 v{T+5}, v{T+2}, v{T+3}")
        a(f"v_mov_b32 v{T+6}, v{T+4}")
        a(f"v_mov_b32 v{T+7}, v{T+5}")
        a("s_nop 1")
        a(f"v_permlane32_swap_b32 v{T+4}, v{T+6}")
        a(f"v_permlane32_swap_b32 v{T+5}, v{T+7}")
        a("s_nop 1")
        a(f"v_add_f32 v{T+4}, v{T+4}, v{T+6}")
        a(f"v_add_f32 v{T+5}, v{T+5}, v{T+7}")
        a("v_lshlrev_b32 v5, 3, v2")
        a("s_lshl_b32 s33, s31, 14")
        a("s_lshl_b32 s34, s30, 8")
        a("s_add_u32 s33, s33, s34")
        a("s_add_u32 s33, s33, 0x%x" % (OFF_STB if kind == "wo" else OFF_STA))
        a(f"buffer_store_dwordx2 v[{T+4}:{T+5}], v5, s[4:7], s33 offen")
    for r in range(8):
        a(f"v_cvt_pk_bf16_f32 v{ACC+r}, v{ACC+2*r}, v{ACC+2*r+1}")
    if kind != "ffn2b":
        a(f"buffer_store_dwordx4 v[{ACC}:{ACC+3}], v4, s[4:7], s32 offen")
        a(f"buffer_store_dwordx4 v[{ACC+4}:{ACC+7}], v4, s[4:7], s32 offen offset:1024")
    else:
        a("v_mul_u32_u24 v5, 896, v2")
        a("v_lshl_add_u32 v5, v3, 3, v5")
        a("s_mul_i32 s33, s30, %d" % (32 * 896))
        a("s_lshl_b32 s34, s31, 6")
        a("s_add_u32 s33, s33, s34")
        for i in range(4):
            a(f"buffer_store_dwordx2 v[{ACC+2*i}:{ACC+2*i+1}], v5, s[8:11], s33 offen offset:{16*i}")
    a.label(f"{kind}_end")
    a("s_endpgm")
    nv = TV + 48
    return descriptor(name, nv + R * 16, accum=nv), nv

def gen_attn(a):
    name = "attn_kernel"
    kernel_header(a, name)
    a("s_cmp_ge_u32 s2, 256")
    a("s_cbranch_scc1 attn_end")
    ws_srd(a)
    a("v_lshlrev_b32 v4, 4, v0")
    a("s_and_b32 s20, s2, 7")
    a("s_lshr_b32 s21, s2, 3")
    a("s_and_b32 s22, s21, 1")
    a("s_lshl_b32 s20, s20, 1")
    a("s_add_u32 s20, s20, s22")
    a("s_lshr_b32 s21, s21, 1")
    a("s_and_b32 s22, s3, 3")
    a("s_lshr_b32 s23, s3, 2")
    a("s_lshl_b32 s24, s21, 2")
    a("s_add_u32 s24, s24, s22")
    QF = 8
    KF = 16
    VF = 32
    S = 48
    P = 80
    O = 88
    C = 104
    a("s_lshl_b32 s25, s20, 6")
    a("s_add_u32 s25, s25, s24")
    a("s_lshl_b32 s25, s25, 11")
    a("s_add_u32 s25, s25, 0x%x" % OFF_Q)
    a(f"buffer_load_dwordx4 v[{QF}:{QF+3}], v4, s[4:7], s25 offen")
    a(f"buffer_load_dwordx4 v[{QF+4}:{QF+7}], v4, s[4:7], s25 offen offset:1024")
    a("s_lshl_b32 s26, s20, 6")
    a("s_lshl_b32 s27, s23, 5")
    a("s_add_u32 s26, s26, s27")
    a("s_add_u32 s26, s26, s22")
    a("s_lshl_b32 s26, s26, 12")
    a("s_add_u32 s26, s26, 0x%x" % OFF_KV)
    a("s_lshl_b32 s27, s23, 14")
    a("s_lshl_b32 s28, s22, 12")
    a("s_add_u32 s27, s27, s28")
    a("s_lshl_b32 s29, s23, 14")
    def dma(bufsreg_or_const):
        a(f"s_add_u32 m0, s27, {bufsreg_or_const}")
        a("s_nop 0")
        for q in range(4):
            a(f"buffer_load_dwordx4 v4, s[4:7], s26 offen offset:{q*1024} lds")
        a("s_add_u32 s26, s26, 16384")
    dma("0")
    dma("32768")
    a("v_add_u32 v5, s29, v4")
    a("v_add_u32 v6, 32768, v5")
    a("s_mov_b32 s31, 65536")
    a("s_mov_b32 s32, 65536")
    for r in range(16):
        a(f"v_mov_b32 v{O+r}, 0")
    a("s_waitcnt vmcnt(4)")
    a("s_barrier")
    def rdK(buf, areg, tile):
        a(f"ds_read_b128 v[{KF+8*buf}:{KF+8*buf+3}], v{areg} offset:{tile*4096}")
        a(f"ds_read_b128 v[{KF+8*buf+4}:{KF+8*buf+7}], v{areg} offset:{tile*4096+1024}")
    def rdV(buf, areg, tile):
        a(f"ds_read_b128 v[{VF+8*buf}:{VF+8*buf+3}], v{areg} offset:{tile*4096+2048}")
        a(f"ds_read_b128 v[{VF+8*buf+4}:{VF+8*buf+7}], v{areg} offset:{tile*4096+3072}")
    rdK(0, 5, 0)
    rdK(1, 5, 1)
    rdV(0, 5, 0)
    a("s_waitcnt lgkmcnt(4)")
    s0 = vr(S, 16)
    a(f"v_mfma_f32_32x32x16_bf16 {s0}, {vr(KF,4)}, {vr(QF,4)}, 0")
    a(f"v_mfma_f32_32x32x16_bf16 {s0}, {vr(KF+4,4)}, {vr(QF+4,4)}, {s0}")
    a("s_nop 7")
    a("s_nop 7")
    a(f"v_max3_f32 v{C}, v{S}, v{S+1}, v{S+2}")
    for r in range(3, 15, 2):
        a(f"v_max3_f32 v{C}, v{C}, v{S+r}, v{S+r+1}")
    a(f"v_max_f32 v{C}, v{C}, v{S+15}")
    a(f"v_mov_b32 v{C+1}, v{C}")
    a("s_nop 1")
    a(f"v_permlane32_swap_b32 v{C}, v{C+1}")
    a("s_nop 1")
    a(f"v_max_f32 v7, v{C}, v{C+1}")
    for r in range(16):
        a(f"v_sub_f32 v{C+r}, 0, v7")
    for r in range(16):
        a(f"v_sub_f32 v{S+r}, v{S+r}, v7")
    a("s_mov_b32 s33, 0")
    a("s_waitcnt lgkmcnt(0)")
    a.raw(".p2align 6")
    a.label("attn_loop")
    for i in range(4):
        sb = S + 16 * (i & 1)
        sn = S + 16 * ((i + 1) & 1)
        kb = KF + 8 * ((i + 1) & 1)
        vb = VF + 8 * (i & 1)
        if i == 2:
            a("s_waitcnt vmcnt(0)")
            a("s_barrier")
            a("s_cmp_ge_u32 s33, 6")
            a("s_cbranch_scc1 attn_nodma")
            dma("s31")
            a.label("attn_nodma")
        a(f"v_mfma_f32_32x32x16_bf16 {vr(sn,16)}, {vr(kb,4)}, {vr(QF,4)}, {vr(C,16)}")
        for r in range(0, 4):
            a(f"v_exp_f32 v{sb+r}, v{sb+r}")
        a(f"v_mfma_f32_32x32x16_bf16 {vr(sn,16)}, {vr(kb+4,4)}, {vr(QF+4,4)}, {vr(sn,16)}")
        if i + 2 < 4: rdK(i & 1, 5, i + 2)
        else:         rdK(i & 1, 6, i + 2 - 4)
        for r in range(4, 8):
            a(f"v_exp_f32 v{sb+r}, v{sb+r}")
        if i + 1 < 4: rdV((i + 1) & 1, 5, i + 1)
        else:         rdV((i + 1) & 1, 6, i + 1 - 4)
        for r in range(0, 4):
            a(f"v_cvt_pk_bf16_f32 v{P+r}, v{sb+2*r}, v{sb+2*r+1}")
        for r in range(8, 12):
            a(f"v_exp_f32 v{sb+r}, v{sb+r}")
        a(f"v_mfma_f32_32x32x16_bf16 {vr(O,16)}, {vr(vb,4)}, {vr(P,4)}, {vr(O,16)}")
        for r in range(12, 16):
            a(f"v_exp_f32 v{sb+r}, v{sb+r}")
        a("s_nop 0")
        for r in range(4, 8):
            a(f"v_cvt_pk_bf16_f32 v{P+r}, v{sb+2*r}, v{sb+2*r+1}")
        a("s_nop 1")
        a(f"v_mfma_f32_32x32x16_bf16 {vr(O,16)}, {vr(vb+4,4)}, {vr(P+4,4)}, {vr(O,16)}")
        a("s_waitcnt lgkmcnt(0)")
    a("v_mov_b32 v5, v6")
    a("s_add_u32 s34, s31, s29")
    a("v_add_u32 v6, s34, v4")
    a("s_add_u32 s31, s31, 32768")
    a("s_cmp_eq_u32 s31, 98304")
    a("s_cselect_b32 s31, 0, s31")
    a("s_add_u32 s33, s33, 1")
    a("s_cmp_lt_u32 s33, 8")
    a("s_cbranch_scc1 attn_loop")
    a("s_barrier")
    a("s_nop 7")
    a("s_lshl_b32 s34, s22, 13")
    a("v_add_u32 v5, s34, v4")
    a("s_cmp_eq_u32 s23, 0")
    a("s_cbranch_scc1 attn_lo")
    for q in range(4):
        a(f"ds_write_b128 v5, v[{O+4*q}:{O+4*q+3}] offset:{q*1024}")
    a("v_lshlrev_b32 v6, 2, v0")
    a("v_add_u32 v6, s34, v6")
    a("ds_write_b32 v6, v7 offset:4096")
    a("s_waitcnt lgkmcnt(0)")
    a("s_barrier")
    a("s_endpgm")
    a.label("attn_lo")
    a("s_barrier")
    for q in range(4):
        a(f"ds_read_b128 v[{S+4*q}:{S+4*q+3}], v5 offset:{q*1024}")
    a("v_lshlrev_b32 v6, 2, v0")
    a("v_add_u32 v6, s34, v6")
    a("ds_read_b32 v8, v6 offset:4096")
    a("s_waitcnt lgkmcnt(0)")
    a("v_max_f32 v9, v7, v8")
    a("v_sub_f32 v10, v7, v9")
    a("v_sub_f32 v12, v8, v9")
    a("v_exp_f32 v10, v10")
    a("v_exp_f32 v12, v12")
    a("s_nop 0")
    for r in range(0, 16, 2):
        a(f"v_pk_mul_f32 v[{O+r}:{O+r+1}], v[{O+r}:{O+r+1}], v[10:11] op_sel_hi:[1,0]")
    for r in range(0, 16, 2):
        a(f"v_pk_fma_f32 v[{O+r}:{O+r+1}], v[{S+r}:{S+r+1}], v[12:13], v[{O+r}:{O+r+1}] op_sel_hi:[1,0,1]")
    a(f"v_mov_b32 v14, v{O+12}")
    a(f"v_mov_b32 v15, v{O+12}")
    a("s_nop 1")
    a("v_permlane32_swap_b32 v14, v15")
    a("s_nop 1")
    a("v_rcp_f32 v16, v15")
    a("s_nop 0")
    for r in range(0, 16, 2):
        a(f"v_pk_mul_f32 v[{O+r}:{O+r+1}], v[{O+r}:{O+r+1}], v[16:17] op_sel_hi:[1,0]")
    for r in range(8):
        a(f"v_cvt_pk_bf16_f32 v{O+r}, v{O+2*r}, v{O+2*r+1}")
    a("s_lshl_b32 s25, s24, 5")
    a("s_lshl_b32 s26, s20, 1")
    a("s_add_u32 s25, s25, s26")
    a("s_lshl_b32 s25, s25, 10")
    a("s_add_u32 s25, s25, 0x%x" % OFF_O)
    a(f"buffer_store_dwordx4 v[{O}:{O+3}], v4, s[4:7], s25 offen")
    a(f"buffer_store_dwordx4 v[{O+4}:{O+7}], v4, s[4:7], s25 offen offset:1024")
    a.label("attn_end")
    a("s_endpgm")
    return descriptor(name, 120)

def main(out_path, nempty=0, upto=99):
    a = Asm()
    descs = []
    hdr = open("cdna_kernels/%s.s.ref" % NAME).read().split("\n")
    head = [l for l in hdr if l.startswith(";") and "@launch" not in l and "Override" not in l and "grid=ceil" not in l]
    head = head[:head.index([l for l in head if "offset  80" in l][0]) + 1]
    launches = [
        ("prep_kernel", 252, 256, 1024),
        ("qkv_kernel", 256, 256, 86016 + 1024),
        ("attn_kernel", 256, 512, 98304),
        ("wo_kernel", 224, 256, 49152),
        ("ffn1_kernel", 224, 256, 114688),
        ("ffn2a_kernel", 224, 256, 49152),
        ("qkv_kernel", 256, 256, 86016 + 1024),
        ("attn_kernel", 256, 512, 98304),
        ("wo_kernel", 224, 256, 49152),
        ("ffn1_kernel", 224, 256, 114688),
        ("ffn2b_kernel", 224, 256, 49152),
    ][:upto]
    for i in range(nempty):
        launches.append(("empty_kernel", 256, 256, 0))
    txt = "\n".join(head) + "\n"
    for (k, g, b, l) in launches:
        txt += f"; @launch kernel={k} grid=({g},1,1) block=({b},1,1) lds={l}\n"
    a.raw('.amdgcn_target "amdgcn-amd-amdhsa--gfx950"')
    a.raw(".text")
    descs.append(gen_prep(a))
    d, nv = gen_gemm_a(a, "qkv"); descs.append(d)
    descs.append(gen_attn(a))
    d, nv = gen_gemm_b(a, "wo"); descs.append(d)
    d, nv = gen_gemm_a(a, "ffn1"); descs.append(d)
    d, nv = gen_gemm_b(a, "ffn2a"); descs.append(d)
    d, nv = gen_gemm_b(a, "ffn2b"); descs.append(d)
    if nempty:
        kernel_header(a, "empty_kernel")
        a("s_endpgm")
        descs.append(descriptor("empty_kernel", 8, 16))
    txt += a.text()
    txt += '.section .rodata,"a"\n' + "".join(descs)
    open(out_path, "w").write(txt)

if __name__ == "__main__":
    out = sys.argv[1] if len(sys.argv) > 1 else "cdna_kernels/%s.s" % NAME
    nempty = int(sys.argv[2]) if len(sys.argv) > 2 else 0
    main(out, nempty)
```

```python
import sys, math, struct

NAME = "interleave_layers__mha_block__dense_activation_gelu__prompt"

OFF_WQKV = 0x000000
OFF_WO   = 0x150000
OFF_W1   = 0x1C0000
OFF_W2   = 0x348000
OFF_CSQ  = 0x4D0000
OFF_CS1  = 0x4D2000
OFF_B1   = 0x4D4000
OFF_B2   = 0x4D6000
OFF_STA  = 0x4D8000
OFF_STB  = 0x518000
OFF_X    = 0x600000
OFF_Q    = 0x800000
OFF_KV   = 0xA00000
OFF_O    = 0xE00000
OFF_H    = 0x1000000
WS_USED  = 0x1900000

def f32(x):
    return struct.unpack("<I", struct.pack("<f", x))[0]

class Asm:
    def __init__(self):
        self.lines = []
    def __call__(self, s):
        self.lines.append("  " + s)
    def label(self, l):
        self.lines.append(l + ":")
    def raw(self, s):
        self.lines.append(s)
    def text(self):
        return "\n".join(self.lines) + "\n"

def vr(b, n):
    return f"v[{b}:{b+n-1}]" if n > 1 else f"v{b}"
def sr(b, n):
    return f"s[{b}:{b+n-1}]" if n > 1 else f"s{b}"

def kernel_header(a, name):
    a.raw(f".globl {name}")
    a.raw(".p2align 8")
    a.raw(f".type {name},@function")
    a.label(name)

def descriptor(name, vgprs, sgprs=96, accum=None):
    if accum is None:
        accum = (vgprs + 3) // 4 * 4
    return f""".p2align 6
.amdhsa_kernel {name}
  .amdhsa_next_free_vgpr {vgprs}
  .amdhsa_next_free_sgpr {sgprs}
  .amdhsa_accum_offset {accum}
  .amdhsa_group_segment_fixed_size 0
  .amdhsa_kernarg_size 88
  .amdhsa_user_sgpr_count 2
  .amdhsa_user_sgpr_kernarg_segment_ptr 1
  .amdhsa_system_sgpr_workgroup_id_x 1
.end_amdhsa_kernel
"""

def ws_srd(a):
    a("s_load_dwordx2 s[4:5], s[0:1], 80")
    a("v_lshrrev_b32 v1, 6, v0")
    a("v_and_b32 v0, 63, v0")
    a("v_readfirstlane_b32 s3, v1")
    a("s_mov_b32 s6, 0x%x" % WS_USED)
    a("s_mov_b32 s7, 0x20000")
    a("s_waitcnt lgkmcnt(0)")
    a("s_and_b32 s5, s5, 0xffff")

def make_srd(a, d, karg_off, nbytes):
    a(f"s_load_dwordx2 s[{d}:{d+1}], s[0:1], {karg_off}")
    a(f"s_mov_b32 s{d+2}, {nbytes}")
    a(f"s_mov_b32 s{d+3}, 0x20000")

OOB = 0x7f000000
import os
STAMP = os.environ.get("STAMP", "0") == "1"
OFF_STAMP = 0x1800000
KSLOT = {"prep": 0, "qkv": 1, "attn": 2, "wo": 3, "ffn1": 4, "ffn2a": 5, "ffn2b": 6}
def stamp(a, i, real=False):
    if not STAMP: return
    a("s_memrealtime s[60:61]" if real else "s_memtime s[60:61]")
    a("s_waitcnt lgkmcnt(0)")
    a(f"s_mov_b32 s{70+i}, s60")
def stamp_flush(a, kind, nwaves):
    if not STAMP: return
    a("s_mul_i32 s62, s2, %d" % nwaves)
    a("s_add_u32 s62, s62, s3")
    a("s_lshl_b32 s62, s62, 6")
    a("s_add_u32 s62, s62, 0x%x" % (OFF_STAMP + KSLOT[kind] * 0x20000))
    a("v_mov_b32 v1, 0")
    for i in range(16):
        a(f"v_mov_b32 v2, s{70+i}")
        a(f"buffer_store_dword v2, v1, s[4:7], s62 offen offset:{4*i}")
        a("s_nop 1")

def gen_prep(a, zero_flags=None):
    name = "prep_kernel"
    kernel_header(a, name)
    a("s_cmp_ge_u32 s2, %d" % (253 if zero_flags else 252))
    a("s_cbranch_scc1 prep_end")
    ws_srd(a)
    if zero_flags:
        a("s_cmp_lt_u32 s2, 252")
        a("s_cbranch_scc1 prep_nz")
        a("v_lshlrev_b32 v4, 4, v0")
        for r in range(4): a(f"v_mov_b32 v{8+r}, 0")
        a("s_lshl_b32 s20, s3, 12")
        a("s_add_u32 s20, s20, 0x%x" % zero_flags[0])
        for q in range(4):
            a(f"buffer_store_dwordx4 v[8:11], v4, s[4:7], s20 offen offset:{q*1024}")
        a("s_endpgm")
        a.label("prep_nz")
    a("v_and_b32 v2, 31, v0")
    a("v_lshrrev_b32 v3, 5, v0")
    a("v_lshlrev_b32 v4, 4, v0")
    a("s_cmp_ge_u32 s2, 188")
    a("s_cbranch_scc1 prep_x")
    a("s_cmp_ge_u32 s2, 160")
    a("s_cbranch_scc1 prep_wo")
    a("s_cmp_ge_u32 s2, 104")
    a("s_cbranch_scc1 prep_w2")
    a("s_cmp_ge_u32 s2, 48")
    a("s_cbranch_scc1 prep_w1")

    def wblock(nfr, stride, row_of, dst_of, colsum, masked_second=None):
        base = 16
        for i in range(nfr):
            for j in range(8):
                r = row_of(i) + (j & 3) + 8 * (j >> 2)
                a(f"s_add_u32 s22, s20, {r * stride}")
                voff = "v5"
                if masked_second and masked_second(i) and j >= 4:
                    voff = "v6"
                a(f"buffer_load_ushort v{base + 8 * i + j}, {voff}, s[8:11], s22 offen")
        if colsum:
            a("v_mov_b32 v8, 0")
            a("v_mov_b32 v9, 0x3f803f80")
        for i in range(nfr):
            a(f"s_waitcnt vmcnt({8 * (nfr - 1 - i)})")
            b = base + 8 * i
            for q in range(4):
                a(f"v_lshl_or_b32 v{b + q}, v{b + 2 * q + 1}, 16, v{b + 2 * q}")
            if colsum:
                for q in range(4):
                    a(f"v_dot2_f32_bf16 v8, v{b + q}, v9, v8")
        for i in range(nfr):
            b = base + 8 * i
            a(f"s_add_u32 s22, s21, {dst_of(i)}")
            a(f"buffer_store_dwordx4 v[{b}:{b+3}], v4, s[4:7], s22 offen")

    def colsum_finish(cs_off_sreg):
        a("v_mov_b32 v10, v8")
        a("s_nop 1")
        a("v_permlane32_swap_b32 v8, v10")
        a("s_nop 1")
        a("v_add_f32 v8, v8, v10")
        a("s_lshl_b32 s23, s3, 7")
        a("v_lshlrev_b32 v11, 2, v2")
        a("v_add_u32 v12, s23, v11")
        a("ds_write_b32 v12, v8")
        a("s_waitcnt lgkmcnt(0)")
        a("s_barrier")
        a("ds_read_b32 v12, v11")
        a("ds_read_b32 v13, v11 offset:128")
        a("ds_read_b32 v14, v11 offset:256")
        a("ds_read_b32 v15, v11 offset:384")
        a("s_waitcnt lgkmcnt(0)")
        a("v_add_f32 v12, v12, v13")
        a("v_add_f32 v14, v14, v15")
        a("v_add_f32 v12, v12, v14")
        a("s_cmp_lg_u32 s3, 0")
        a(f"s_cbranch_scc1 {cs_off_sreg[1]}")
        a(f"buffer_store_dword v12, v11, s[4:7], {cs_off_sreg[0]} offen")
        a.label(cs_off_sreg[1])

    make_srd(a, 8, 8, 448 * 1344 * 2)
    a("s_mul_i32 s24, s2, 21846")
    a("s_lshr_b32 s24, s24, 16")
    a("s_mul_i32 s25, s24, 3")
    a("s_sub_u32 s25, s2, s25")
    a("s_mul_i32 s26, s25, 448")
    a("s_mul_i32 s27, s24, 28")
    a("s_add_u32 s26, s26, s27")
    a("s_lshl_b32 s26, s26, 1")
    a("s_mul_i32 s27, s3, %d" % (7 * 16 * 2688))
    a("s_add_u32 s20, s26, s27")
    a("v_mul_u32_u24 v5, %d, v3" % (4 * 2688))
    a("v_lshl_add_u32 v5, v2, 1, v5")
    a("v_mov_b32 v7, 0x%x" % OOB)
    a("v_cmp_gt_u32 vcc, 28, v2")
    a("s_nop 1")
    a("v_cndmask_b32 v5, v7, v5, vcc")
    a("s_mul_i32 s21, s24, 86016")
    a("s_mul_i32 s27, s3, %d" % (7 * 3072))
    a("s_add_u32 s21, s21, s27")
    a("s_lshl_b32 s27, s25, 10")
    a("s_add_u32 s21, s21, s27")
    a("s_add_u32 s21, s21, 0x%x" % OFF_WQKV)
    a("s_lshl_b32 s28, s2, 7")
    a("s_add_u32 s28, s28, 0x%x" % OFF_CSQ)
    a("s_waitcnt lgkmcnt(0)")
    a("s_and_b32 s9, s9, 0xffff")
    wblock(7, 2688, lambda i: 16 * i, lambda i: i * 3072, True)
    colsum_finish(("s28", "prep_q_done"))
    a("s_endpgm")

    a.label("prep_w1")
    make_srd(a, 8, 32, 448 * 1792 * 2)
    make_srd(a, 12, 40, 1792 * 2)
    a("s_sub_u32 s24, s2, 48")
    a("s_lshl_b32 s26, s24, 6")
    a("s_mul_i32 s27, s3, %d" % (7 * 16 * 3584))
    a("s_add_u32 s20, s26, s27")
    a("v_mul_u32_u24 v5, %d, v3" % (4 * 3584))
    a("v_lshl_add_u32 v5, v2, 1, v5")
    a("s_lshr_b32 s25, s24, 2")
    a("s_mul_i32 s21, s25, %d" % (28 * 4096))
    a("s_mul_i32 s27, s3, %d" % (7 * 4096))
    a("s_add_u32 s21, s21, s27")
    a("s_and_b32 s27, s24, 3")
    a("s_lshl_b32 s27, s27, 10")
    a("s_add_u32 s21, s21, s27")
    a("s_add_u32 s21, s21, 0x%x" % OFF_W1)
    a("s_lshl_b32 s28, s24, 7")
    a("s_add_u32 s29, s28, 0x%x" % OFF_B1)
    a("s_add_u32 s28, s28, 0x%x" % OFF_CS1)
    a("s_waitcnt lgkmcnt(0)")
    a("s_and_b32 s9, s9, 0xffff")
    a("s_and_b32 s13, s13, 0xffff")
    a("v_lshlrev_b32 v7, 1, v2")
    a("buffer_load_ushort v6, v7, s[12:15], s26 offen")
    a("v_lshlrev_b32 v7, 2, v2")
    a("s_waitcnt vmcnt(0)")
    a("v_lshlrev_b32 v6, 16, v6")
    a("buffer_store_dword v6, v7, s[4:7], s29 offen")
    wblock(7, 3584, lambda i: 16 * i, lambda i: i * 4096, True)
    colsum_finish(("s28", "prep_1_done"))
    a("s_endpgm")

    a.label("prep_w2")
    make_srd(a, 8, 48, 1792 * 448 * 2)
    make_srd(a, 12, 56, 448 * 2)
    a("s_sub_u32 s24, s2, 104")
    a("s_lshr_b32 s25, s24, 2")
    a("s_and_b32 s24, s24, 3")
    a("s_mul_i32 s27, s24, 28")
    a("s_mul_i32 s29, s3, 7")
    a("s_add_u32 s27, s27, s29")
    a("s_lshl_b32 s26, s25, 6")
    a("s_mul_i32 s29, s27, %d" % (16 * 896))
    a("s_add_u32 s20, s26, s29")
    a("v_mul_u32_u24 v5, %d, v3" % (4 * 896))
    a("v_lshl_add_u32 v5, v2, 1, v5")
    a("s_mul_i32 s21, s25, %d" % (112 * 1024))
    a("s_lshl_b32 s29, s27, 10")
    a("s_add_u32 s21, s21, s29")
    a("s_add_u32 s21, s21, 0x%x" % OFF_W2)
    a("s_lshl_b32 s29, s25, 7")
    a("s_add_u32 s29, s29, 0x%x" % OFF_B2)
    a("s_waitcnt lgkmcnt(0)")
    a("s_and_b32 s9, s9, 0xffff")
    a("s_and_b32 s13, s13, 0xffff")
    a("v_lshlrev_b32 v7, 1, v2")
    a("buffer_load_ushort v6, v7, s[12:15], s26 offen")
    a("v_lshlrev_b32 v7, 2, v2")
    a("s_waitcnt vmcnt(0)")
    a("v_lshlrev_b32 v6, 16, v6")
    a("buffer_store_dword v6, v7, s[4:7], s29 offen")
    wblock(7, 896, lambda i: 16 * i, lambda i: i * 1024, False)
    a("s_endpgm")

    a.label("prep_wo")
    make_srd(a, 8, 16, 448 * 448 * 2)
    a("s_sub_u32 s24, s2, 160")
    a("s_lshr_b32 s25, s24, 1")
    a("s_and_b32 s24, s24, 1")
    a("s_lshl_b32 s27, s24, 4")
    a("s_lshl_b32 s29, s3, 2")
    a("s_add_u32 s27, s27, s29")
    a("s_mul_i32 s29, s27, %d" % (14 * 896))
    a("s_lshl_b32 s26, s25, 6")
    a("s_add_u32 s20, s26, s29")
    a("v_mul_u32_u24 v5, %d, v3" % (4 * 896))
    a("v_lshl_add_u32 v5, v2, 1, v5")
    a("v_mov_b32 v7, 0x%x" % OOB)
    a("v_cmp_eq_u32 vcc, 0, v3")
    a("s_nop 1")
    a("v_cndmask_b32 v6, v7, v5, vcc")
    a("s_mul_i32 s21, s25, %d" % (32 * 1024))
    a("s_lshl_b32 s29, s27, 10")
    a("s_add_u32 s21, s21, s29")
    a("s_add_u32 s21, s21, 0x%x" % OFF_WO)
    a("s_waitcnt lgkmcnt(0)")
    a("s_and_b32 s9, s9, 0xffff")
    wblock(4, 896, lambda i: [0, 16, 28, 44][i], lambda i: i * 1024, False, masked_second=lambda i: i & 1)
    a("s_endpgm")

    a.label("prep_x")
    make_srd(a, 8, 0, 2048 * 448 * 2)
    a("s_sub_u32 s24, s2, 188")
    a("v_mul_u32_u24 v5, 896, v2")
    a("v_lshl_add_u32 v5, v3, 3, v5")
    a("s_mul_i32 s20, s24, %d" % (32 * 896))
    a("s_mul_i32 s27, s3, %d" % (7 * 32))
    a("s_add_u32 s20, s20, s27")
    a("s_mul_i32 s21, s24, %d" % (28 * 1024))
    a("s_mul_i32 s27, s3, %d" % (7 * 1024))
    a("s_add_u32 s21, s21, s27")
    a("s_add_u32 s21, s21, 0x%x" % OFF_X)
    a("s_waitcnt lgkmcnt(0)")
    a("s_and_b32 s9, s9, 0xffff")
    for i in range(7):
        a(f"buffer_load_dwordx2 v[{16+4*i}:{17+4*i}], v5, s[8:11], s20 offen offset:{32*i}")
        a(f"buffer_load_dwordx2 v[{18+4*i}:{19+4*i}], v5, s[8:11], s20 offen offset:{32*i+16}")
    a("v_mov_b32 v8, 0")
    a("v_mov_b32 v9, 0")
    a("v_mov_b32 v10, 0x3f803f80")
    a("s_waitcnt vmcnt(0)")
    for i in range(7):
        a(f"s_add_u32 s22, s21, {i*1024}")
        a(f"buffer_store_dwordx4 v[{16+4*i}:{19+4*i}], v4, s[4:7], s22 offen")
    for i in range(28):
        a(f"v_dot2_f32_bf16 v8, v{16+i}, v10, v8")
        a(f"v_dot2_f32_bf16 v9, v{16+i}, v{16+i}, v9")
    a("v_mov_b32 v12, v8")
    a("v_mov_b32 v13, v9")
    a("s_nop 1")
    a("v_permlane32_swap_b32 v8, v12")
    a("v_permlane32_swap_b32 v9, v13")
    a("s_nop 1")
    a("v_add_f32 v8, v8, v12")
    a("v_add_f32 v9, v9, v13")
    a("v_cmp_eq_u32 vcc, 0, v3")
    a("s_nop 1")
    a("v_cndmask_b32 v8, 0, v8, vcc")
    a("v_cndmask_b32 v9, 0, v9, vcc")
    a("v_lshlrev_b32 v11, 3, v2")
    a("v_lshl_add_u32 v11, v3, 16, v11")
    a("s_lshl_b32 s22, s24, 8")
    a("s_lshl_b32 s27, s3, 14")
    a("s_add_u32 s22, s22, s27")
    a("s_add_u32 s22, s22, 0x%x" % OFF_STA)
    a("buffer_store_dwordx2 v[8:9], v11, s[4:7], s22 offen")
    a("v_mov_b32 v14, 0")
    a("v_mov_b32 v15, 0")
    a("s_add_u32 s22, s22, 0x%x" % (8 * 16384))
    a("buffer_store_dwordx2 v[14:15], v11, s[4:7], s22 offen")
    a.label("prep_end")
    a("s_endpgm")
    return descriptor(name, 80)

def stats_issue(a, vbase, s_tt, st_off, vtmp, stmp):
    a(f"v_mul_u32_u24 v{vtmp}, {7*16384}, v3")
    a(f"v_lshl_add_u32 v{vtmp}, v2, 3, v{vtmp}")
    a(f"s_lshl_b32 s{stmp}, s{s_tt}, 8")
    a(f"s_add_u32 s{stmp}, s{stmp}, 0x%x" % st_off)
    for i in range(7):
        a(f"buffer_load_dwordx2 v[{vbase+2*i}:{vbase+2*i+1}], v{vtmp}, s[4:7], s{stmp} offen")
        if i < 6:
            a(f"s_add_u32 s{stmp}, s{stmp}, 16384")

def stats_finish(a, vbase, v_nmean, v_rstd, t0, t1):
    for i in range(1, 7):
        a(f"v_add_f32 v{vbase}, v{vbase}, v{vbase+2*i}")
        a(f"v_add_f32 v{vbase+1}, v{vbase+1}, v{vbase+2*i+1}")
    a(f"v_mov_b32 v{t0}, v{vbase}")
    a(f"v_mov_b32 v{t1}, v{vbase+1}")
    a("s_nop 1")
    a(f"v_permlane32_swap_b32 v{vbase}, v{t0}")
    a(f"v_permlane32_swap_b32 v{vbase+1}, v{t1}")
    a("s_nop 1")
    a(f"v_add_f32 v{vbase}, v{vbase}, v{t0}")
    a(f"v_add_f32 v{vbase+1}, v{vbase+1}, v{t1}")
    a(f"v_mul_f32 v{v_nmean}, 0x%x, v{vbase}" % f32(-1.0 / 448))
    a(f"v_mul_f32 v{t0}, 0x%x, v{vbase+1}" % f32(1.0 / 448))
    a(f"v_fma_f32 v{t0}, -v{v_nmean}, v{v_nmean}, v{t0}")
    a(f"v_max_f32 v{t0}, 0, v{t0}")
    a(f"v_add_f32 v{t0}, 0x%x, v{t0}" % f32(1e-5))
    a(f"v_rsq_f32 v{v_rstd}, v{t0}")
    a("s_nop 0")

def gen_gemm_a(a, kind):
    NT = 3 if kind == "qkv" else 4
    name = kind + "_kernel"
    ngrid = 256 if kind == "qkv" else 224
    kernel_header(a, name)
    a(f"s_cmp_ge_u32 s2, {ngrid}")
    a(f"s_cbranch_scc1 {kind}_end")
    stamp(a, 0, True)
    stamp(a, 1)
    ws_srd(a)
    a("v_and_b32 v2, 31, v0")
    a("v_lshrrev_b32 v3, 5, v0")
    a("v_lshlrev_b32 v4, 4, v0")
    a("s_and_b32 s20, s2, 7")
    a("s_lshr_b32 s21, s2, 3")
    a("s_and_b32 s22, s21, 1")
    a("s_lshl_b32 s20, s20, 1")
    a("s_add_u32 s20, s20, s22")
    a("s_lshr_b32 s21, s21, 1")
    a("s_lshl_b32 s20, s20, 2")
    a("s_add_u32 s20, s20, s3")
    XF = 0
    WF = 112
    ACC = 24
    ST = ACC + 16 * NT
    CS = ST + 16
    TMP = CS + (36 if kind == "qkv" else 128)
    def ar(b, n): return f"a[{b}:{b+n-1}]"
    a("v_add_u32 v8, 0x10000, v4")
    stats_issue(a, ST, 20, OFF_STA if kind == "qkv" else OFF_STB, 5, 23)
    a("v_lshlrev_b32 v6, 4, v3")
    if kind == "qkv":
        a("s_mul_i32 s23, s21, %d" % (3 * 128))
        a("s_add_u32 s23, s23, 0x%x" % OFF_CSQ)
        for p in range(2):
            for g in range(4):
                a(f"buffer_load_dwordx4 v[{CS+16*p+4*g}:{CS+16*p+4*g+3}], v6, s[4:7], s23 offen offset:{p*128+g*32}")
        a("v_lshlrev_b32 v7, 2, v2")
        a(f"buffer_load_dword v{CS+32}, v7, s[4:7], s23 offen offset:256")
    else:
        a("s_lshl_b32 s23, s21, 9")
        a("s_add_u32 s24, s23, 0x%x" % OFF_B1)
        a("s_add_u32 s23, s23, 0x%x" % OFF_CS1)
        for nt in range(4):
            for g in range(4):
                a(f"buffer_load_dwordx4 v[{CS+16*nt+4*g}:{CS+16*nt+4*g+3}], v6, s[4:7], s23 offen offset:{nt*128+g*32}")
        for nt in range(4):
            for g in range(4):
                a(f"buffer_load_dwordx4 v[{CS+64+16*nt+4*g}:{CS+64+16*nt+4*g+3}], v6, s[4:7], s24 offen offset:{nt*128+g*32}")
    a("s_mul_i32 s25, s20, %d" % (28 * 1024))
    a("s_add_u32 s25, s25, 0x%x" % OFF_X)
    a("s_mul_i32 s26, s21, %d" % (28 * NT * 1024))
    a("s_mul_i32 s27, s3, %d" % (NT * 1024))
    a("s_add_u32 s26, s26, s27")
    a("s_add_u32 s26, s26, 0x%x" % (OFF_WQKV if kind == "qkv" else OFF_W1))
    for c in range(7):
        a("s_mov_b32 m0, s27")
        for k in range(4):
            ks = 4 * c + k
            a(f"buffer_load_dwordx4 {ar(XF+4*ks,4)}, v4, s[4:7], s25 offen offset:{k*1024}")
        for p in range(NT):
            a(f"buffer_load_dwordx4 v4, s[4:7], s26 offen offset:{p*1024} lds")
        if c < 6:
            a("s_add_u32 s25, s25, 4096")
            a(f"s_add_u32 s26, s26, {4*NT*1024}")
            a(f"s_add_u32 s27, s27, {4*NT*1024}")
    for r in range(16 * NT):
        a(f"v_mov_b32 v{ACC+r}, 0")
    per = 4 + NT
    stamp(a, 2)
    for c in range(7):
        a(f"s_waitcnt vmcnt({(6-c)*per})")
        a("s_barrier")
        stamp(a, 3 + c)
        for k in range(4):
            ks = 4 * c + k
            for p in range(NT):
                off = (ks * NT + p) * 1024
                areg = "v4" if off < 65536 else "v8"
                a(f"ds_read_b128 {ar(WF+(k*NT+p)*4,4)}, {areg} offset:{off & 0xffff}")
        for k in range(4):
            ks = 4 * c + k
            a(f"s_waitcnt lgkmcnt({(3-k)*NT})")
            for p in range(NT):
                w = ar(WF + (k * NT + p) * 4, 4)
                x = ar(XF + 4 * ks, 4)
                acc = vr(ACC + 16 * p, 16)
                if kind == "qkv" and p == 2:
                    a(f"v_mfma_f32_32x32x16_bf16 {acc}, {x}, {w}, {acc}")
                else:
                    a(f"v_mfma_f32_32x32x16_bf16 {acc}, {w}, {x}, {acc}")
    stamp(a, 10)
    NM, RS = 10, 12
    stats_finish(a, ST, NM, RS, 14, 15)
    if kind == "qkv":
        qscale = (28 ** -0.5) * math.log2(math.e)
        a("v_mul_f32 v14, 0x%x, v%d" % (f32(qscale), RS))
        a(f"v_mul_f32 v15, v{NM}, v{RS}")
        a("s_lshl_b32 s27, s3, 8")
        a("s_add_u32 s27, s27, 86016")
        a("v_lshlrev_b32 v7, 2, v2")
        a("v_add_u32 v7, s27, v7")
        a(f"ds_write_b32 v7, v{RS}")
        a("ds_write_b32 v7, v15 offset:128")
        a("v_add_u32 v7, s27, v6")
        a("s_waitcnt lgkmcnt(0)")
        TA, TB = TMP, TMP + 16
        a("s_nop 7")
        for g in range(4):
            a(f"ds_read_b128 v[{TA+4*g}:{TA+4*g+3}], v7 offset:{32*g}")
            a(f"ds_read_b128 v[{TB+4*g}:{TB+4*g+3}], v7 offset:{128+32*g}")
        a("s_nop 7")
        for p in range(2):
            acc = ACC + 16 * p
            cs = CS + 16 * p
            for r in range(0, 16, 2):
                a(f"v_pk_fma_f32 v[{acc+r}:{acc+r+1}], v[{cs+r}:{cs+r+1}], v[{NM}:{NM+1}], v[{acc+r}:{acc+r+1}] op_sel_hi:[1,0,1]")
            sc = 14 if p == 0 else RS
            for r in range(0, 16, 2):
                a(f"v_pk_mul_f32 v[{acc+r}:{acc+r+1}], v[{acc+r}:{acc+r+1}], v[{sc}:{sc+1}] op_sel_hi:[1,0]")
            for r in range(8):
                a(f"v_cvt_pk_bf16_f32 v{acc+r}, v{acc+2*r}, v{acc+2*r+1}")
        a("s_lshl_b32 s23, s21, 6")
        a("s_add_u32 s23, s23, s20")
        a("s_lshl_b32 s24, s23, 11")
        a("s_add_u32 s24, s24, 0x%x" % OFF_Q)
        a("s_lshl_b32 s23, s23, 12")
        a("s_add_u32 s23, s23, 0x%x" % OFF_KV)
        a(f"buffer_store_dwordx4 v[{ACC}:{ACC+3}], v4, s[4:7], s24 offen")
        a(f"buffer_store_dwordx4 v[{ACC+4}:{ACC+7}], v4, s[4:7], s24 offen offset:1024")
        a(f"buffer_store_dwordx4 v[{ACC+16}:{ACC+19}], v4, s[4:7], s23 offen")
        a(f"buffer_store_dwordx4 v[{ACC+20}:{ACC+23}], v4, s[4:7], s23 offen offset:1024")
        a("v_cmp_eq_u32 vcc, 28, v2")
        a("v_mov_b32 v9, 1.0")
        a("s_nop 0")
        a("v_cndmask_b32 v9, 0, v9, vcc")
        a("s_waitcnt lgkmcnt(0)")
        acc = ACC + 32
        for r in range(16):
            a(f"v_fma_f32 v{TB+r}, v{TB+r}, v{CS+32}, v9")
        for r in range(16):
            a(f"v_fma_f32 v{acc+r}, v{acc+r}, v{TA+r}, v{TB+r}")
        for r in range(8):
            a(f"v_cvt_pk_bf16_f32 v{acc+r}, v{acc+2*r}, v{acc+2*r+1}")
        a(f"buffer_store_dwordx4 v[{acc}:{acc+3}], v4, s[4:7], s23 offen offset:2048")
        a(f"buffer_store_dwordx4 v[{acc+4}:{acc+7}], v4, s[4:7], s23 offen offset:3072")
    else:
        c1 = -2.0 * math.sqrt(2.0 / math.pi) * math.log2(math.e)
        c2 = c1 * 0.044715
        a(f"v_mul_f32 v14, v{NM}, v{RS}")
        a("s_mov_b32 s40, 0x%x" % f32(c1))
        a("s_mov_b32 s41, 0x%x" % f32(c1))
        a("s_mov_b32 s42, 0x%x" % f32(c2))
        a("s_mov_b32 s43, 0x%x" % f32(c2))
        a("v_mov_b32 v16, s40")
        a("v_mov_b32 v17, s40")
        a("s_mul_i32 s23, s20, 112")
        a("s_lshl_b32 s24, s21, 3")
        a("s_add_u32 s23, s23, s24")
        a("s_lshl_b32 s23, s23, 10")
        a("s_add_u32 s23, s23, 0x%x" % OFF_H)
        T0 = TMP
        for nt in range(4):
            acc = ACC + 16 * nt
            cs = CS + 16 * nt
            bb = CS + 64 + 16 * nt
            for r in range(0, 16, 2):
                a(f"v_pk_fma_f32 v[{bb+r}:{bb+r+1}], v[{cs+r}:{cs+r+1}], v[14:15], v[{bb+r}:{bb+r+1}] op_sel_hi:[1,0,1]")
            for r in range(0, 16, 2):
                a(f"v_pk_fma_f32 v[{acc+r}:{acc+r+1}], v[{acc+r}:{acc+r+1}], v[{RS}:{RS+1}], v[{bb+r}:{bb+r+1}] op_sel_hi:[1,0,1]")
            for r in range(0, 16, 2):
                a(f"v_pk_mul_f32 v[{T0+r}:{T0+r+1}], v[{acc+r}:{acc+r+1}], v[{acc+r}:{acc+r+1}]")
            for r in range(0, 16, 2):
                a(f"v_pk_fma_f32 v[{T0+r}:{T0+r+1}], v[{T0+r}:{T0+r+1}], s[42:43], v[16:17]")
            for r in range(0, 16, 2):
                a(f"v_pk_mul_f32 v[{T0+r}:{T0+r+1}], v[{T0+r}:{T0+r+1}], v[{acc+r}:{acc+r+1}]")
            for r in range(16):
                a(f"v_exp_f32 v{T0+r}, v{T0+r}")
            for r in range(0, 16, 2):
                a(f"v_pk_add_f32 v[{T0+r}:{T0+r+1}], v[{T0+r}:{T0+r+1}], 1.0 op_sel_hi:[1,0]")
            for r in range(16):
                a(f"v_rcp_f32 v{T0+r}, v{T0+r}")
            for r in range(0, 16, 2):
                a(f"v_pk_mul_f32 v[{acc+r}:{acc+r+1}], v[{acc+r}:{acc+r+1}], v[{T0+r}:{T0+r+1}]")
            for r in range(8):
                a(f"v_cvt_pk_bf16_f32 v{acc+r}, v{acc+2*r}, v{acc+2*r+1}")
            if nt == 2:
                a("s_add_u32 s23, s23, 4096")
            o = (nt & 1) * 2048
            a(f"buffer_store_dwordx4 v[{acc}:{acc+3}], v4, s[4:7], s23 offen offset:{o}")
            a(f"buffer_store_dwordx4 v[{acc+4}:{acc+7}], v4, s[4:7], s23 offen offset:{o+1024}")
    stamp(a, 11)
    if STAMP: a("s_waitcnt vmcnt(0)")
    stamp(a, 12)
    stamp(a, 13, True)
    stamp_flush(a, kind, 4)
    a.label(f"{kind}_end")
    a("s_endpgm")
    nv = (TMP + (32 if kind == 'qkv' else 16) + 3) // 4 * 4
    return descriptor(name, nv + 112 + 16 * NT, accum=nv), nv

def gen_gemm_b(a, kind):
    KS = 32 if kind == "wo" else 112
    KW = KS // 4
    name = kind + "_kernel"
    kernel_header(a, name)
    a("s_cmp_ge_u32 s2, 224")
    a(f"s_cbranch_scc1 {kind}_end")
    if kind == "ffn2b":
        make_srd(a, 8, 64, 2048 * 448 * 2)
    stamp(a, 0, True)
    stamp(a, 1)
    ws_srd(a)
    if kind == "ffn2b":
        a("s_and_b32 s9, s9, 0xffff")
    a("v_and_b32 v2, 31, v0")
    a("v_lshrrev_b32 v3, 5, v0")
    a("v_lshlrev_b32 v4, 4, v0")
    a("s_and_b32 s20, s2, 7")
    a("s_lshr_b32 s21, s2, 3")
    a("s_and_b32 s22, s21, 3")
    a("s_lshl_b32 s20, s20, 2")
    a("s_add_u32 s20, s20, s22")
    a("s_lshr_b32 s21, s21, 2")
    a("s_lshr_b32 s22, s3, 1")
    a("s_and_b32 s23, s3, 1")
    a("s_lshl_b32 s30, s20, 1")
    a("s_add_u32 s30, s30, s22")
    a("s_lshl_b32 s31, s21, 1")
    a("s_add_u32 s31, s31, s23")
    RES = 8
    BIA = 16
    ACC = 32
    FR = 0
    TV = 96
    def ar(b, n): return f"a[{b}:{b+n-1}]"
    a("s_mul_i32 s32, s30, 28")
    a("s_lshl_b32 s33, s31, 1")
    a("s_add_u32 s32, s32, s33")
    a("s_lshl_b32 s32, s32, 10")
    a("s_add_u32 s32, s32, 0x%x" % OFF_X)
    a(f"buffer_load_dwordx4 v[{RES}:{RES+3}], v4, s[4:7], s32 offen")
    a(f"buffer_load_dwordx4 v[{RES+4}:{RES+7}], v4, s[4:7], s32 offen offset:1024")
    if kind != "wo":
        a("v_lshlrev_b32 v6, 4, v3")
        a("s_lshl_b32 s33, s31, 7")
        a("s_add_u32 s33, s33, 0x%x" % OFF_B2)
        for g in range(4):
            a(f"buffer_load_dwordx4 v[{BIA+4*g}:{BIA+4*g+3}], v6, s[4:7], s33 offen offset:{g*32}")
    src = OFF_O if kind == "wo" else OFF_H
    wof = OFF_WO if kind == "wo" else OFF_W2
    a("s_mul_i32 s28, s3, %d" % (KW * 1024))
    a("s_mul_i32 s24, s20, %d" % (2 * KS * 1024))
    a("s_add_u32 s24, s24, s28")
    a("s_add_u32 s24, s24, 0x%x" % src)
    a("s_add_u32 s25, s24, %d" % (KS * 1024))
    a("s_mul_i32 s26, s21, %d" % (2 * KS * 1024))
    a("s_add_u32 s26, s26, s28")
    a("s_add_u32 s26, s26, 0x%x" % wof)
    a("s_add_u32 s27, s26, %d" % (KS * 1024))
    R = 8 if KW == 8 else 12
    def issue(ks):
        slot = ks % R
        o = (ks % 4) * 1024
        b = FR + slot * 16
        a(f"buffer_load_dwordx4 {ar(b,4)}, v4, s[4:7], s24 offen offset:{o}")
        a(f"buffer_load_dwordx4 {ar(b+4,4)}, v4, s[4:7], s25 offen offset:{o}")
        a(f"buffer_load_dwordx4 {ar(b+8,4)}, v4, s[4:7], s26 offen offset:{o}")
        a(f"buffer_load_dwordx4 {ar(b+12,4)}, v4, s[4:7], s27 offen offset:{o}")
        if ks % 4 == 3:
            for s in (24, 25, 26, 27):
                a(f"s_add_u32 s{s}, s{s}, 4096")
    for ks in range(min(R, KW)):
        issue(ks)
    for r in range(64):
        a(f"v_mov_b32 v{ACC+r}, 0")
    stamp(a, 2)
    for ks in range(KW):
        if ks in (1, KW // 4, KW // 2, 3 * KW // 4): stamp(a, 3 + [1, KW // 4, KW // 2, 3 * KW // 4].index(ks))
        inflight_after = min(KW, ks + R) - (ks + 1)
        a(f"s_waitcnt vmcnt({4*inflight_after if 4*inflight_after < 64 else 63})")
        b = FR + (ks % R) * 16
        for ti in range(2):
            for ni in range(2):
                acc = vr(ACC + 16 * (2 * ti + ni), 16)
                a(f"v_mfma_f32_32x32x16_bf16 {acc}, {ar(b+8+4*ni,4)}, {ar(b+4*ti,4)}, {acc}")
        if ks + R < KW:
            issue(ks + R)
    a("s_nop 7")
    a("s_nop 7")
    stamp(a, 10)
    for w in range(4):
        a(f"s_cmp_eq_u32 s3, {w}")
        a(f"s_cbranch_scc1 {kind}_red{w}")
    for w in range(4):
        a.label(f"{kind}_red{w}")
        for d in range(4):
            if d == w: continue
            slot = (w - d - 1) & 3
            for q in range(4):
                b = ACC + 16 * d + 4 * q
                a(f"ds_write_b128 v4, v[{b}:{b+3}] offset:{(d*3+slot)*4096 + q*1024}")
        if w != 0:
            a("s_waitcnt lgkmcnt(0)")
            for r in range(16):
                a(f"v_mov_b32 v{ACC+r}, v{ACC+16*w+r}")
        if w != 3:
            a(f"s_branch {kind}_redj")
    a.label(f"{kind}_redj")
    a("s_mul_i32 s33, s3, %d" % (3 * 4096))
    a("v_add_u32 v5, s33, v4")
    a("s_waitcnt lgkmcnt(0)")
    a("s_barrier")
    T = TV
    stamp(a, 9)
    for sl in range(3):
        for q in range(4):
            a(f"ds_read_b128 v[{T+16*sl+4*q}:{T+16*sl+4*q+3}], v5 offset:{sl*4096+q*1024}")
    for sl in range(3):
        a(f"s_waitcnt lgkmcnt({(2-sl)*4})")
        for r in range(0, 16, 2):
            a(f"v_pk_add_f32 v[{ACC+r}:{ACC+r+1}], v[{ACC+r}:{ACC+r+1}], v[{T+16*sl+r}:{T+16*sl+r+1}]")
    a("s_waitcnt vmcnt(0)")
    if kind != "wo":
        for r in range(0, 16, 2):
            a(f"v_pk_add_f32 v[{ACC+r}:{ACC+r+1}], v[{ACC+r}:{ACC+r+1}], v[{BIA+r}:{BIA+r+1}]")
    for q in range(8):
        a(f"v_lshlrev_b32 v{T+2*q}, 16, v{RES+q}")
        a(f"v_and_b32 v{T+2*q+1}, 0xffff0000, v{RES+q}")
    for r in range(0, 16, 2):
        a(f"v_pk_add_f32 v[{ACC+r}:{ACC+r+1}], v[{ACC+r}:{ACC+r+1}], v[{T+r}:{T+r+1}]")
    if kind != "ffn2b":
        a(f"v_pk_add_f32 v[{T}:{T+1}], v[{ACC}:{ACC+1}], v[{ACC+2}:{ACC+3}]")
        a(f"v_pk_mul_f32 v[{T+2}:{T+3}], v[{ACC}:{ACC+1}], v[{ACC}:{ACC+1}]")
        a(f"v_pk_fma_f32 v[{T+2}:{T+3}], v[{ACC+2}:{ACC+3}], v[{ACC+2}:{ACC+3}], v[{T+2}:{T+3}]")
        for r in range(4, 16, 2):
            a(f"v_pk_add_f32 v[{T}:{T+1}], v[{T}:{T+1}], v[{ACC+r}:{ACC+r+1}]")
            a(f"v_pk_fma_f32 v[{T+2}:{T+3}], v[{ACC+r}:{ACC+r+1}], v[{ACC+r}:{ACC+r+1}], v[{T+2}:{T+3}]")
        a(f"v_add_f32 v{T+4}, v{T}, v{T+1}")
        a(f"v_add_f32 v{T+5}, v{T+2}, v{T+3}")
        a(f"v_mov_b32 v{T+6}, v{T+4}")
        a(f"v_mov_b32 v{T+7}, v{T+5}")
        a("s_nop 1")
        a(f"v_permlane32_swap_b32 v{T+4}, v{T+6}")
        a(f"v_permlane32_swap_b32 v{T+5}, v{T+7}")
        a("s_nop 1")
        a(f"v_add_f32 v{T+4}, v{T+4}, v{T+6}")
        a(f"v_add_f32 v{T+5}, v{T+5}, v{T+7}")
        a("v_lshlrev_b32 v5, 3, v2")
        a("s_lshl_b32 s33, s31, 14")
        a("s_lshl_b32 s34, s30, 8")
        a("s_add_u32 s33, s33, s34")
        a("s_add_u32 s33, s33, 0x%x" % (OFF_STB if kind == "wo" else OFF_STA))
        a(f"buffer_store_dwordx2 v[{T+4}:{T+5}], v5, s[4:7], s33 offen")
    for r in range(8):
        a(f"v_cvt_pk_bf16_f32 v{ACC+r}, v{ACC+2*r}, v{ACC+2*r+1}")
    if kind != "ffn2b":
        a(f"buffer_store_dwordx4 v[{ACC}:{ACC+3}], v4, s[4:7], s32 offen")
        a(f"buffer_store_dwordx4 v[{ACC+4}:{ACC+7}], v4, s[4:7], s32 offen offset:1024")
    else:
        a("v_mul_u32_u24 v5, 896, v2")
        a("v_lshl_add_u32 v5, v3, 3, v5")
        a("s_mul_i32 s33, s30, %d" % (32 * 896))
        a("s_lshl_b32 s34, s31, 6")
        a("s_add_u32 s33, s33, s34")
        for i in range(4):
            a(f"buffer_store_dwordx2 v[{ACC+2*i}:{ACC+2*i+1}], v5, s[8:11], s33 offen offset:{16*i}")
    stamp(a, 11)
    if STAMP: a("s_waitcnt vmcnt(0)")
    stamp(a, 12)
    stamp(a, 13, True)
    stamp_flush(a, kind, 4)
    a.label(f"{kind}_end")
    a("s_endpgm")
    nv = TV + 48
    return descriptor(name, nv + R * 16, accum=nv), nv

def gen_attn(a):
    name = "attn_kernel"
    kernel_header(a, name)
    a("s_cmp_ge_u32 s2, 256")
    a("s_cbranch_scc1 attn_end")
    stamp(a, 0, True)
    stamp(a, 1)
    ws_srd(a)
    a("v_lshlrev_b32 v4, 4, v0")
    a("s_and_b32 s20, s2, 7")
    a("s_lshr_b32 s21, s2, 3")
    a("s_and_b32 s22, s21, 1")
    a("s_lshl_b32 s20, s20, 1")
    a("s_add_u32 s20, s20, s22")
    a("s_lshr_b32 s21, s21, 1")
    a("s_and_b32 s22, s3, 3")
    a("s_lshr_b32 s23, s3, 2")
    a("s_lshl_b32 s24, s21, 2")
    a("s_add_u32 s24, s24, s22")
    QF = 8
    KF = 16
    VF = 32
    S = 48
    P = 80
    O = 88
    C = 104
    a("s_lshl_b32 s25, s20, 6")
    a("s_add_u32 s25, s25, s24")
    a("s_lshl_b32 s25, s25, 11")
    a("s_add_u32 s25, s25, 0x%x" % OFF_Q)
    a(f"buffer_load_dwordx4 v[{QF}:{QF+3}], v4, s[4:7], s25 offen")
    a(f"buffer_load_dwordx4 v[{QF+4}:{QF+7}], v4, s[4:7], s25 offen offset:1024")
    a("s_lshl_b32 s26, s20, 6")
    a("s_lshl_b32 s27, s23, 5")
    a("s_add_u32 s26, s26, s27")
    a("s_add_u32 s26, s26, s22")
    a("s_lshl_b32 s26, s26, 12")
    a("s_add_u32 s26, s26, 0x%x" % OFF_KV)
    a("s_lshl_b32 s27, s23, 14")
    a("s_lshl_b32 s28, s22, 12")
    a("s_add_u32 s27, s27, s28")
    a("s_lshl_b32 s29, s23, 14")
    def dma(bufsreg_or_const):
        a(f"s_add_u32 m0, s27, {bufsreg_or_const}")
        a("s_nop 0")
        for q in range(4):
            a(f"buffer_load_dwordx4 v4, s[4:7], s26 offen offset:{q*1024} lds")
        a("s_add_u32 s26, s26, 16384")
    dma("0")
    dma("32768")
    a("v_add_u32 v5, s29, v4")
    a("v_add_u32 v6, 32768, v5")
    a("s_mov_b32 s31, 65536")
    a("s_mov_b32 s32, 65536")
    for r in range(16):
        a(f"v_mov_b32 v{O+r}, 0")
    stamp(a, 2)
    a("s_waitcnt vmcnt(4)")
    a("s_barrier")
    stamp(a, 3)
    def rdK(buf, areg, tile):
        a(f"ds_read_b128 v[{KF+8*buf}:{KF+8*buf+3}], v{areg} offset:{tile*4096}")
        a(f"ds_read_b128 v[{KF+8*buf+4}:{KF+8*buf+7}], v{areg} offset:{tile*4096+1024}")
    def rdV(buf, areg, tile):
        a(f"ds_read_b128 v[{VF+8*buf}:{VF+8*buf+3}], v{areg} offset:{tile*4096+2048}")
        a(f"ds_read_b128 v[{VF+8*buf+4}:{VF+8*buf+7}], v{areg} offset:{tile*4096+3072}")
    rdK(0, 5, 0)
    rdK(1, 5, 1)
    rdV(0, 5, 0)
    a("s_waitcnt lgkmcnt(4)")
    s0 = vr(S, 16)
    a(f"v_mfma_f32_32x32x16_bf16 {s0}, {vr(KF,4)}, {vr(QF,4)}, 0")
    a(f"v_mfma_f32_32x32x16_bf16 {s0}, {vr(KF+4,4)}, {vr(QF+4,4)}, {s0}")
    a("s_nop 7")
    a("s_nop 7")
    a(f"v_max3_f32 v{C}, v{S}, v{S+1}, v{S+2}")
    for r in range(3, 15, 2):
        a(f"v_max3_f32 v{C}, v{C}, v{S+r}, v{S+r+1}")
    a(f"v_max_f32 v{C}, v{C}, v{S+15}")
    a(f"v_mov_b32 v{C+1}, v{C}")
    a("s_nop 1")
    a(f"v_permlane32_swap_b32 v{C}, v{C+1}")
    a("s_nop 1")
    a(f"v_max_f32 v7, v{C}, v{C+1}")
    for r in range(16):
        a(f"v_sub_f32 v{C+r}, 0, v7")
    for r in range(16):
        a(f"v_sub_f32 v{S+r}, v{S+r}, v7")
    stamp(a, 4)
    a("s_mov_b32 s33, 0")
    a("s_waitcnt lgkmcnt(0)")
    a.raw(".p2align 6")
    a.label("attn_loop")
    for i in range(4):
        sb = S + 16 * (i & 1)
        sn = S + 16 * ((i + 1) & 1)
        kb = KF + 8 * ((i + 1) & 1)
        vb = VF + 8 * (i & 1)
        if i == 2:
            a("s_waitcnt vmcnt(0)")
            a("s_barrier")
            a("s_cmp_ge_u32 s33, 6")
            a("s_cbranch_scc1 attn_nodma")
            dma("s31")
            a.label("attn_nodma")
        a(f"v_mfma_f32_32x32x16_bf16 {vr(sn,16)}, {vr(kb,4)}, {vr(QF,4)}, {vr(C,16)}")
        for r in range(0, 4):
            a(f"v_exp_f32 v{sb+r}, v{sb+r}")
        a(f"v_mfma_f32_32x32x16_bf16 {vr(sn,16)}, {vr(kb+4,4)}, {vr(QF+4,4)}, {vr(sn,16)}")
        if i + 2 < 4: rdK(i & 1, 5, i + 2)
        else:         rdK(i & 1, 6, i + 2 - 4)
        for r in range(4, 8):
            a(f"v_exp_f32 v{sb+r}, v{sb+r}")
        if i + 1 < 4: rdV((i + 1) & 1, 5, i + 1)
        else:         rdV((i + 1) & 1, 6, i + 1 - 4)
        for r in range(0, 4):
            a(f"v_cvt_pk_bf16_f32 v{P+r}, v{sb+2*r}, v{sb+2*r+1}")
        for r in range(8, 12):
            a(f"v_exp_f32 v{sb+r}, v{sb+r}")
        a(f"v_mfma_f32_32x32x16_bf16 {vr(O,16)}, {vr(vb,4)}, {vr(P,4)}, {vr(O,16)}")
        for r in range(12, 16):
            a(f"v_exp_f32 v{sb+r}, v{sb+r}")
        a("s_nop 0")
        for r in range(4, 8):
            a(f"v_cvt_pk_bf16_f32 v{P+r}, v{sb+2*r}, v{sb+2*r+1}")
        a("s_nop 1")
        a(f"v_mfma_f32_32x32x16_bf16 {vr(O,16)}, {vr(vb+4,4)}, {vr(P+4,4)}, {vr(O,16)}")
        a("s_waitcnt lgkmcnt(0)")
    a("v_mov_b32 v5, v6")
    a("s_add_u32 s34, s31, s29")
    a("v_add_u32 v6, s34, v4")
    a("s_add_u32 s31, s31, 32768")
    a("s_cmp_eq_u32 s31, 98304")
    a("s_cselect_b32 s31, 0, s31")
    a("s_add_u32 s33, s33, 1")
    a("s_cmp_lt_u32 s33, 8")
    a("s_cbranch_scc1 attn_loop")
    stamp(a, 10)
    a("s_barrier")
    a("s_nop 7")
    a("s_lshl_b32 s34, s22, 13")
    a("v_add_u32 v5, s34, v4")
    a("s_cmp_eq_u32 s23, 0")
    a("s_cbranch_scc1 attn_lo")
    for q in range(4):
        a(f"ds_write_b128 v5, v[{O+4*q}:{O+4*q+3}] offset:{q*1024}")
    a("v_lshlrev_b32 v6, 2, v0")
    a("v_add_u32 v6, s34, v6")
    a("ds_write_b32 v6, v7 offset:4096")
    a("s_waitcnt lgkmcnt(0)")
    a("s_barrier")
    stamp(a, 11)
    stamp(a, 12)
    stamp(a, 13, True)
    stamp_flush(a, "attn", 8)
    a("s_endpgm")
    a.label("attn_lo")
    a("s_barrier")
    for q in range(4):
        a(f"ds_read_b128 v[{S+4*q}:{S+4*q+3}], v5 offset:{q*1024}")
    a("v_lshlrev_b32 v6, 2, v0")
    a("v_add_u32 v6, s34, v6")
    a("ds_read_b32 v8, v6 offset:4096")
    a("s_waitcnt lgkmcnt(0)")
    a("v_max_f32 v9, v7, v8")
    a("v_sub_f32 v10, v7, v9")
    a("v_sub_f32 v12, v8, v9")
    a("v_exp_f32 v10, v10")
    a("v_exp_f32 v12, v12")
    a("s_nop 0")
    for r in range(0, 16, 2):
        a(f"v_pk_mul_f32 v[{O+r}:{O+r+1}], v[{O+r}:{O+r+1}], v[10:11] op_sel_hi:[1,0]")
    for r in range(0, 16, 2):
        a(f"v_pk_fma_f32 v[{O+r}:{O+r+1}], v[{S+r}:{S+r+1}], v[12:13], v[{O+r}:{O+r+1}] op_sel_hi:[1,0,1]")
    a(f"v_mov_b32 v14, v{O+12}")
    a(f"v_mov_b32 v15, v{O+12}")
    a("s_nop 1")
    a("v_permlane32_swap_b32 v14, v15")
    a("s_nop 1")
    a("v_rcp_f32 v16, v15")
    a("s_nop 0")
    for r in range(0, 16, 2):
        a(f"v_pk_mul_f32 v[{O+r}:{O+r+1}], v[{O+r}:{O+r+1}], v[16:17] op_sel_hi:[1,0]")
    for r in range(8):
        a(f"v_cvt_pk_bf16_f32 v{O+r}, v{O+2*r}, v{O+2*r+1}")
    a("s_lshl_b32 s25, s24, 5")
    a("s_lshl_b32 s26, s20, 1")
    a("s_add_u32 s25, s25, s26")
    a("s_lshl_b32 s25, s25, 10")
    a("s_add_u32 s25, s25, 0x%x" % OFF_O)
    a(f"buffer_store_dwordx4 v[{O}:{O+3}], v4, s[4:7], s25 offen")
    a(f"buffer_store_dwordx4 v[{O+4}:{O+7}], v4, s[4:7], s25 offen offset:1024")
    stamp(a, 11)
    if STAMP: a("s_waitcnt vmcnt(0)")
    stamp(a, 12)
    stamp(a, 13, True)
    stamp_flush(a, "attn", 8)
    a.label("attn_end")
    a("s_endpgm")
    return descriptor(name, 120)

def main(out_path, nempty=0, upto=99):
    a = Asm()
    descs = []
    hdr = open("cdna_kernels/%s.s.ref" % NAME).read().split("\n")
    head = [l for l in hdr if l.startswith(";") and "@launch" not in l and "Override" not in l and "grid=ceil" not in l]
    head = head[:head.index([l for l in head if "offset  80" in l][0]) + 1]
    launches = [
        ("prep_kernel", 252, 256, 1024),
        ("qkv_kernel", 256, 256, 86016 + 1024),
        ("attn_kernel", 256, 512, 98304),
        ("wo_kernel", 224, 256, 49152),
        ("ffn1_kernel", 224, 256, 114688),
        ("ffn2a_kernel", 224, 256, 49152),
        ("qkv_kernel", 256, 256, 86016 + 1024),
        ("attn_kernel", 256, 512, 98304),
        ("wo_kernel", 224, 256, 49152),
        ("ffn1_kernel", 224, 256, 114688),
        ("ffn2b_kernel", 224, 256, 49152),
    ][:upto]
    for i in range(nempty):
        launches.append(("empty_kernel", 256, 256, 0))
    txt = "\n".join(head) + "\n"
    for (k, g, b, l) in launches:
        txt += f"; @launch kernel={k} grid=({g},1,1) block=({b},1,1) lds={l}\n"
    a.raw('.amdgcn_target "amdgcn-amd-amdhsa--gfx950"')
    a.raw(".text")
    descs.append(gen_prep(a))
    d, nv = gen_gemm_a(a, "qkv"); descs.append(d)
    descs.append(gen_attn(a))
    d, nv = gen_gemm_b(a, "wo"); descs.append(d)
    d, nv = gen_gemm_a(a, "ffn1"); descs.append(d)
    d, nv = gen_gemm_b(a, "ffn2a"); descs.append(d)
    d, nv = gen_gemm_b(a, "ffn2b"); descs.append(d)
    if nempty:
        kernel_header(a, "empty_kernel")
        a("s_endpgm")
        descs.append(descriptor("empty_kernel", 8, 16))
    txt += a.text()
    txt += '.section .rodata,"a"\n' + "".join(descs)
    open(out_path, "w").write(txt)

if __name__ == "__main__":
    out = sys.argv[1] if len(sys.argv) > 1 else "cdna_kernels/%s.s" % NAME
    nempty = int(sys.argv[2]) if len(sys.argv) > 2 else 0
    main(out, nempty)
```

```python
import sys, math, struct, os
import gen as G1
from gen import Asm, vr, sr, f32, kernel_header, descriptor, make_srd, NAME

OFF_WQKV = 0x0000000
OFF_WO   = 0x0150000
OFF_W1   = 0x01C0000
OFF_W2   = 0x0348000
OFF_CSQ  = 0x04D0000
OFF_CS1  = 0x04D2000
OFF_B1   = 0x04D4000
OFF_B2   = 0x04D6000
OFF_FL   = 0x04E0000
OFF_ST   = 0x0500000
OFF_X    = 0x0600000
OFF_KV   = 0x0D00000
OFF_O    = 0x1500000
OFF_H    = 0x1900000
OFF_STAMP = 0x2700000
WS_USED  = 0x2800000
XSZ, STSZ = 0x1C0000, 0x40000
STAMP = os.environ.get("STAMP", "0") == "1"
LDS_BYTES = 160 * 1024
RING = 112 * 1024

def ar(b, n): return f"a[{b}:{b+n-1}]" if n > 1 else f"a{b}"

class VM:
    def __init__(self, a): self.a = a; self.n = 0
    def op(self, text):
        self.a(text); self.n += 1; return self.n - 1
    def wait(self, idx):
        k = self.n - 1 - idx
        self.a(f"s_waitcnt vmcnt({min(k, 63)})")
    def reset(self): self.n = 0

_uid = [0]
def uid(p):
    _uid[0] += 1
    return f"{p}_{_uid[0]}"

NSTAMP = [0]
def stamp(a, tag=None):
    if not STAMP: return
    i = NSTAMP[0]; NSTAMP[0] += 1
    assert i < 13
    a("s_memtime s[60:61]")
    a("s_waitcnt lgkmcnt(0)")
    a("s_cmp_eq_u32 s14, 0")
    a(f"s_cselect_b32 s{70+i}, s60, s{70+i}")
    a(f"s_cselect_b32 s{83+i}, s{83+i}, s60")

def local_barrier(a):
    end = uid("lb_end"); slow = uid("lb_slow"); poll = uid("lb_poll"); poll2 = uid("lb_poll2"); known = uid("lb_known"); px = uid("lb_px"); done = uid("lb_done")
    a("s_waitcnt vmcnt(0) lgkmcnt(0)")
    a("s_barrier")
    a("s_add_u32 s15, s15, 1")
    a("s_cmp_lg_u32 s3, 0")
    a(f"s_cbranch_scc1 {end}")
    a("v_lshlrev_b32 v5, 2, v2")
    a("s_lshl_b32 s40, s12, 7")
    a("s_mov_b32 s42, 0")
    a("s_cmp_lg_u32 s15, 1")
    a(f"s_cbranch_scc1 {known}")
    a("s_add_u32 s41, s40, 0x%x" % OFF_FL)
    a.label(px)
    a("s_add_u32 s42, s42, 1")
    a("s_cmp_gt_u32 s42, 0x40000")
    a(f"s_cbranch_scc1 {known}")
    a("buffer_load_dword v6, v5, s[4:7], s41 offen sc0 sc1")
    a("s_waitcnt vmcnt(0)")
    a("v_cmp_eq_u32 vcc, 0, v6")
    a(f"s_cbranch_vccnz {px}")
    a("v_readfirstlane_b32 s43, v6")
    a("s_nop 1")
    a("v_cmp_ne_u32 vcc, s43, v6")
    a("s_mov_b32 s16, 0")
    a(f"s_cbranch_vccnz {known}")
    a("s_mov_b32 s16, 1")
    a.label(known)
    a("s_add_u32 s41, s40, 0x%x" % (OFF_FL + 0x1000))
    a("s_lshl_b32 s43, s13, 2")
    a("s_add_u32 s43, s43, s41")
    a("v_mov_b32 v6, s15")
    a("v_mov_b32 v7, 0")
    a("s_mov_b32 s42, 0")
    a("s_cmp_eq_u32 s16, 0")
    a(f"s_cbranch_scc1 {slow}")
    a("s_mov_b64 exec, 1")
    a("buffer_store_dword v6, v7, s[4:7], s43 offen")
    a("s_mov_b64 exec, -1")
    a.label(poll)
    a("s_add_u32 s42, s42, 1")
    a("s_cmp_gt_u32 s42, 0x40000")
    a(f"s_cbranch_scc1 {end}")
    a("buffer_load_dword v6, v5, s[4:7], s41 offen sc1")
    a("s_waitcnt vmcnt(0)")
    a("v_cmp_gt_u32 vcc, s15, v6")
    a(f"s_cbranch_vccnz {poll}")
    a(f"s_branch {end}")
    a.label(slow)
    a("buffer_wbl2 sc1")
    a("s_waitcnt vmcnt(0)")
    a("s_mov_b64 exec, 1")
    a("buffer_store_dword v6, v7, s[4:7], s43 offen sc0 sc1")
    a("s_mov_b64 exec, -1")
    a.label(poll2)
    a("s_add_u32 s42, s42, 1")
    a("s_cmp_gt_u32 s42, 0x40000")
    a(f"s_cbranch_scc1 {done}")
    a("buffer_load_dword v6, v5, s[4:7], s41 offen sc0 sc1")
    a("s_waitcnt vmcnt(0)")
    a("v_cmp_gt_u32 vcc, s15, v6")
    a(f"s_cbranch_vccnz {poll2}")
    a.label(done)
    a("buffer_inv sc1")
    a("s_waitcnt vmcnt(0)")
    a.label(end)
    a("s_barrier")

def stats_issue(a, vm, vbase, s_tt, s_stoff, vtmp, stmp):
    a(f"v_mul_u32_u24 v{vtmp}, {7*16384}, v3")
    a(f"v_lshl_add_u32 v{vtmp}, v2, 3, v{vtmp}")
    a(f"s_lshl_b32 s{stmp}, s{s_tt}, 8")
    a(f"s_add_u32 s{stmp}, s{stmp}, s{s_stoff}")
    last = None
    for i in range(7):
        last = vm.op(f"buffer_load_dwordx2 v[{vbase+2*i}:{vbase+2*i+1}], v{vtmp}, s[4:7], s{stmp} offen")
        if i < 6:
            a(f"s_add_u32 s{stmp}, s{stmp}, 16384")
    return last

def wqkv_dma(a, vm):
    a("s_lshr_b32 s30, s13, 1")
    a("s_mul_i32 s30, s30, 86016")
    a("s_mul_i32 s31, s3, 3072")
    a("s_add_u32 s30, s30, s31")
    a("s_add_u32 s30, s30, 0x%x" % OFF_WQKV)
    for c in range(7):
        a("s_mov_b32 m0, s31")
        if c: pass
        a("s_nop 0")
        for p in range(3):
            vm.op(f"buffer_load_dwordx4 v4, s[4:7], s30 offen offset:{p*1024} lds")
        if c < 6:
            a("s_add_u32 s30, s30, 12288")
            a("s_add_u32 s31, s31, 12288")

def gen_main(a):
    name = "main_kernel"
    kernel_header(a, name)
    a("s_cmp_ge_u32 s2, 256")
    a("s_cbranch_scc1 main_end")
    a("s_load_dwordx2 s[4:5], s[0:1], 80")
    a("s_load_dwordx2 s[8:9], s[0:1], 64")
    a("v_lshrrev_b32 v1, 6, v0")
    a("v_and_b32 v0, 63, v0")
    a("v_readfirstlane_b32 s3, v1")
    a("s_mov_b32 s6, 0x%x" % WS_USED)
    a("s_mov_b32 s7, 0x20000")
    a("s_mov_b32 s10, %d" % (2048 * 448 * 2))
    a("s_mov_b32 s11, 0x20000")
    a("v_and_b32 v2, 31, v0")
    a("v_lshrrev_b32 v3, 5, v0")
    a("v_lshlrev_b32 v4, 4, v0")
    a("s_and_b32 s12, s2, 7")
    a("s_lshr_b32 s13, s2, 3")
    a("s_mov_b32 s14, 0")
    a("s_mov_b32 s15, 0")
    a("s_mov_b32 s16, 0")
    a("s_getreg_b32 s30, hwreg(HW_REG_XCC_ID)")
    a("s_waitcnt lgkmcnt(0)")
    a("s_and_b32 s5, s5, 0xffff")
    a("s_and_b32 s9, s9, 0xffff")
    vm = VM(a)
    a("s_and_b32 s30, s30, 0xff")
    a("s_add_u32 s30, s30, 1")
    a("s_lshl_b32 s31, s12, 7")
    a("s_lshl_b32 s32, s13, 2")
    a("s_add_u32 s31, s31, s32")
    a("s_add_u32 s31, s31, 0x%x" % OFF_FL)
    a("v_mov_b32 v6, s30")
    a("v_mov_b32 v7, 0")
    a("buffer_store_dword v6, v7, s[4:7], s31 offen sc0 sc1")
    wqkv_dma(a, vm)
    a.label("layer_loop")
    vm.reset()
    a("s_lshl_b32 s30, s14, 1")
    a("s_mul_i32 s17, s30, 0x%x" % XSZ)
    a("s_add_u32 s17, s17, 0x%x" % OFF_X)
    a("s_add_u32 s21, s17, 0x%x" % XSZ)
    a("s_add_u32 s24, s21, 0x%x" % XSZ)
    a("s_mul_i32 s18, s30, 0x%x" % STSZ)
    a("s_add_u32 s18, s18, 0x%x" % OFF_ST)
    a("s_add_u32 s22, s18, 0x%x" % STSZ)
    a("s_add_u32 s25, s22, 0x%x" % STSZ)
    a("s_lshl_b32 s19, s14, 22")
    a("s_add_u32 s19, s19, 0x%x" % OFF_KV)
    a("s_lshl_b32 s20, s14, 21")
    a("s_add_u32 s20, s20, 0x%x" % OFF_O)
    a("s_mul_i32 s23, s14, 0x700000")
    a("s_add_u32 s23, s23, 0x%x" % OFF_H)
    stamp(a)
    a("s_and_b32 s26, s13, 1")
    a("s_lshl_b32 s27, s12, 1")
    a("s_add_u32 s26, s26, s27")
    a("s_lshl_b32 s26, s26, 2")
    a("s_add_u32 s26, s26, s3")
    a("s_lshr_b32 s27, s13, 1")
    ACC, WF, ST, CS, TMP, QF = 16, 64, 100, 116, 152, 184
    a("s_mul_i32 s30, s26, %d" % (28 * 1024))
    a("s_add_u32 s30, s30, s17")
    xid = []
    for ks in range(28):
        xid.append(vm.op(f"buffer_load_dwordx4 {ar(4*ks,4)}, v4, s[4:7], s30 offen offset:{(ks%4)*1024}"))
        if ks % 4 == 3 and ks < 27: a("s_add_u32 s30, s30, 4096")
        if ks == 3:
            pass
    st_last = stats_issue(a, vm, ST, 26, 18, 5, 31)
    a("v_lshlrev_b32 v6, 4, v3")
    a("s_mul_i32 s31, s27, %d" % (3 * 128))
    a("s_add_u32 s31, s31, 0x%x" % OFF_CSQ)
    for p in range(2):
        for g in range(4):
            vm.op(f"buffer_load_dwordx4 v[{CS+16*p+4*g}:{CS+16*p+4*g+3}], v6, s[4:7], s31 offen offset:{p*128+g*32}")
    a("v_lshlrev_b32 v7, 2, v2")
    cs_last = vm.op(f"buffer_load_dword v{CS+32}, v7, s[4:7], s31 offen offset:256")
    for r in range(48):
        a(f"v_mov_b32 v{ACC+r}, 0")
    a("v_add_u32 v8, 0x10000, v4")
    a(f"s_waitcnt vmcnt({min(vm.n, 63)})")
    a("s_barrier")
    stamp(a)
    def rdW(ks):
        for p in range(3):
            off = (ks * 3 + p) * 1024
            areg = "v4" if off < 65536 else "v8"
            b = WF + (ks % 3) * 12 + 4 * p
            a(f"ds_read_b128 v[{b}:{b+3}], {areg} offset:{off & 0xffff}")
    rdW(0); rdW(1)
    for ks in range(28):
        if ks + 2 < 28: rdW(ks + 2)
        nl = min(2, 27 - ks) * 3
        vm.wait(xid[ks])
        a(f"s_waitcnt lgkmcnt({nl})")
        for p in range(3):
            w = vr(WF + (ks % 3) * 12 + 4 * p, 4); x = ar(4 * ks, 4); acc = vr(ACC + 16 * p, 16)
            if p == 2: a(f"v_mfma_f32_32x32x16_bf16 {acc}, {x}, {w}, {acc}")
            else:      a(f"v_mfma_f32_32x32x16_bf16 {acc}, {w}, {x}, {acc}")
    stamp(a)
    vm.wait(cs_last)
    NM, RS = 10, 12
    G1.stats_finish(a, ST, NM, RS, 14, 15)
    qscale = (28 ** -0.5) * math.log2(math.e)
    a(f"v_mul_f32 v15, v{NM}, v{RS}")
    a("s_lshl_b32 s30, s3, 8")
    a("s_add_u32 s30, s30, %d" % RING)
    a("v_lshlrev_b32 v7, 2, v2")
    a("v_add_u32 v7, s30, v7")
    a(f"ds_write_b32 v7, v{RS}")
    a("ds_write_b32 v7, v15 offset:128")
    a("v_add_u32 v7, s30, v6")
    TA, TB = TMP, TMP + 16
    a("s_waitcnt lgkmcnt(0)")
    for g in range(4):
        a(f"ds_read_b128 v[{TA+4*g}:{TA+4*g+3}], v7 offset:{32*g}")
        a(f"ds_read_b128 v[{TB+4*g}:{TB+4*g+3}], v7 offset:{128+32*g}")
    a("s_lshl_b32 s31, s27, 6")
    a("s_add_u32 s31, s31, s26")
    a("s_lshl_b32 s31, s31, 12")
    a("s_add_u32 s31, s31, s19")
    acc, cs = ACC + 16, CS + 16
    for r in range(0, 16, 2):
        a(f"v_pk_fma_f32 v[{acc+r}:{acc+r+1}], v[{cs+r}:{cs+r+1}], v[{NM}:{NM+1}], v[{acc+r}:{acc+r+1}] op_sel_hi:[1,0,1]")
    for r in range(0, 16, 2):
        a(f"v_pk_mul_f32 v[{acc+r}:{acc+r+1}], v[{acc+r}:{acc+r+1}], v[{RS}:{RS+1}] op_sel_hi:[1,0]")
    for r in range(8):
        a(f"v_cvt_pk_bf16_f32 v{acc+r}, v{acc+2*r}, v{acc+2*r+1}")
    a(f"buffer_store_dwordx4 v[{acc}:{acc+3}], v4, s[4:7], s31 offen sc1")
    a(f"buffer_store_dwordx4 v[{acc+4}:{acc+7}], v4, s[4:7], s31 offen offset:1024 sc1")
    a("v_cmp_eq_u32 vcc, 28, v2")
    a("v_mov_b32 v9, 1.0")
    a("s_nop 0")
    a("v_cndmask_b32 v9, 0, v9, vcc")
    a("s_waitcnt lgkmcnt(0)")
    acc = ACC + 32
    for r in range(16):
        a(f"v_fma_f32 v{TB+r}, v{TB+r}, v{CS+32}, v9")
    for r in range(16):
        a(f"v_fma_f32 v{acc+r}, v{acc+r}, v{TA+r}, v{TB+r}")
    for r in range(8):
        a(f"v_cvt_pk_bf16_f32 v{acc+r}, v{acc+2*r}, v{acc+2*r+1}")
    a(f"buffer_store_dwordx4 v[{acc}:{acc+3}], v4, s[4:7], s31 offen offset:2048 sc1")
    a(f"buffer_store_dwordx4 v[{acc+4}:{acc+7}], v4, s[4:7], s31 offen offset:3072 sc1")
    a("v_mul_f32 v14, 0x%x, v%d" % (f32(qscale), RS))
    acc, cs = ACC, CS
    for r in range(0, 16, 2):
        a(f"v_pk_fma_f32 v[{acc+r}:{acc+r+1}], v[{cs+r}:{cs+r+1}], v[{NM}:{NM+1}], v[{acc+r}:{acc+r+1}] op_sel_hi:[1,0,1]")
    for r in range(0, 16, 2):
        a(f"v_pk_mul_f32 v[{acc+r}:{acc+r+1}], v[{acc+r}:{acc+r+1}], v[14:15] op_sel_hi:[1,0]")
    for r in range(8):
        a(f"v_cvt_pk_bf16_f32 v{QF+r}, v{acc+2*r}, v{acc+2*r+1}")
    stamp(a)
    a("s_waitcnt vmcnt(0)")
    a("s_barrier")
    stamp(a)
    a("s_lshl_b32 s30, s14, 4")
    a("s_add_u32 s30, s30, s27")
    a("s_lshl_b32 s30, s30, 7")
    a("s_add_u32 s30, s30, 0x%x" % (OFF_FL + 0x2000))
    a("s_cmp_lg_u32 s3, 0")
    a("s_cbranch_scc1 kv_wait_end")
    a("v_mov_b32 v6, 1")
    a("v_mov_b32 v7, 0")
    a("s_mov_b64 exec, 1")
    a("buffer_atomic_add v6, v7, s[4:7], s30 offen sc1")
    a("s_mov_b32 s42, 0")
    a.label("kv_poll")
    a("s_add_u32 s42, s42, 1")
    a("s_cmp_gt_u32 s42, 0x40000")
    a("s_cbranch_scc1 kv_poll_done")
    a("buffer_load_dword v6, v7, s[4:7], s30 offen sc0 sc1")
    a("s_waitcnt vmcnt(0)")
    a("v_cmp_gt_u32 vcc, 16, v6")
    a("s_cbranch_vccnz kv_poll")
    a.label("kv_poll_done")
    a("s_mov_b64 exec, -1")
    a.label("kv_wait_end")
    a("s_barrier")
    stamp(a)
    KF, VF, S, P, O, C = 16, 32, 48, 80, 88, 104
    NB = 8
    a("s_lshl_b32 s30, s27, 6")
    a("s_add_u32 s30, s30, s3")
    a("s_lshl_b32 s30, s30, 12")
    a("s_add_u32 s30, s30, s19")
    a("s_lshl_b32 s31, s3, 12")
    def kvdma():
        a("s_mov_b32 m0, s31")
        a("s_add_u32 s31, s31, 16384")
        for q in range(4):
            a(f"buffer_load_dwordx4 v4, s[4:7], s30 offen offset:{q*1024} lds")
        a("s_add_u32 s30, s30, 16384")
        a("s_and_b32 s31, s31, 0x1ffff")
    for c in range(NB - 1):
        kvdma()
    for r in range(16):
        a(f"v_mov_b32 v{O+r}, 0")
    a("v_mov_b32 v5, v4")
    a("v_add_u32 v6, 16384, v4")
    a(f"s_waitcnt vmcnt({4*(NB-2)})")
    a("s_barrier")
    stamp(a)
    def rdK(buf, areg, tile):
        a(f"ds_read_b128 v[{KF+8*buf}:{KF+8*buf+3}], v{areg} offset:{tile*4096}")
        a(f"ds_read_b128 v[{KF+8*buf+4}:{KF+8*buf+7}], v{areg} offset:{tile*4096+1024}")
    def rdV(buf, areg, tile):
        a(f"ds_read_b128 v[{VF+8*buf}:{VF+8*buf+3}], v{areg} offset:{tile*4096+2048}")
        a(f"ds_read_b128 v[{VF+8*buf+4}:{VF+8*buf+7}], v{areg} offset:{tile*4096+3072}")
    rdK(0, 5, 0); rdK(1, 5, 1); rdV(0, 5, 0)
    a("s_waitcnt lgkmcnt(4)")
    s0 = vr(S, 16)
    a(f"v_mfma_f32_32x32x16_bf16 {s0}, {vr(KF,4)}, {vr(QF,4)}, 0")
    a(f"v_mfma_f32_32x32x16_bf16 {s0}, {vr(KF+4,4)}, {vr(QF+4,4)}, {s0}")
    a("s_nop 7"); a("s_nop 7")
    a(f"v_max3_f32 v{C}, v{S}, v{S+1}, v{S+2}")
    for r in range(3, 15, 2):
        a(f"v_max3_f32 v{C}, v{C}, v{S+r}, v{S+r+1}")
    a(f"v_max_f32 v{C}, v{C}, v{S+15}")
    a(f"v_mov_b32 v{C+1}, v{C}")
    a("s_nop 1")
    a(f"v_permlane32_swap_b32 v{C}, v{C+1}")
    a("s_nop 1")
    a(f"v_max_f32 v7, v{C}, v{C+1}")
    for r in range(16):
        a(f"v_sub_f32 v{C+r}, 0, v7")
    for r in range(16):
        a(f"v_sub_f32 v{S+r}, v{S+r}, v7")
    for r in range(4, 8):
        a(f"v_mov_b32 v{P+r}, 0")
    for r in range(4, 8):
        a(f"v_mov_b32 v{VF+8+r}, 0")
    a("s_mov_b32 s33, 0")
    a("s_mov_b32 s34, 32768")
    a("s_waitcnt lgkmcnt(0)")
    a.raw(".p2align 6")
    a.label("attn_loop")
    for i in range(4):
        sb = S + 16 * (i & 1); sn = S + 16 * ((i + 1) & 1)
        kb = KF + 8 * ((i + 1) & 1); vb = VF + 8 * (i & 1); vprev = VF + 8 * ((i + 1) & 1)
        if i == 2:
            a("s_cmp_ge_u32 s33, %d" % (16 - (NB - 1)))
            a("s_cbranch_scc1 attn_tail")
            a(f"s_waitcnt vmcnt({4*(NB-3)})")
            a("s_barrier")
            kvdma()
            a("s_branch attn_join")
            a.label("attn_tail")
            a("s_waitcnt vmcnt(0)")
            a("s_barrier")
            a.label("attn_join")
        a(f"v_mfma_f32_32x32x16_bf16 {vr(sn,16)}, {vr(kb,4)}, {vr(QF,4)}, {vr(C,16)}")
        a(f"v_mfma_f32_32x32x16_bf16 {vr(O,16)}, {vr(vprev+4,4)}, {vr(P+4,4)}, {vr(O,16)}")
        for r in range(0, 4): a(f"v_exp_f32 v{sb+r}, v{sb+r}")
        a(f"v_mfma_f32_32x32x16_bf16 {vr(sn,16)}, {vr(kb+4,4)}, {vr(QF+4,4)}, {vr(sn,16)}")
        for r in range(4, 8): a(f"v_exp_f32 v{sb+r}, v{sb+r}")
        if i + 2 < 4: rdK(i & 1, 5, i + 2)
        else:         rdK(i & 1, 6, i + 2 - 4)
        for r in range(0, 4): a(f"v_cvt_pk_bf16_f32 v{P+r}, v{sb+2*r}, v{sb+2*r+1}")
        for r in range(8, 12): a(f"v_exp_f32 v{sb+r}, v{sb+r}")
        a(f"v_mfma_f32_32x32x16_bf16 {vr(O,16)}, {vr(vb,4)}, {vr(P,4)}, {vr(O,16)}")
        for r in range(12, 16): a(f"v_exp_f32 v{sb+r}, v{sb+r}")
        if i + 1 < 4: rdV((i + 1) & 1, 5, i + 1)
        else:         rdV((i + 1) & 1, 6, i + 1 - 4)
        for r in range(4, 8): a(f"v_cvt_pk_bf16_f32 v{P+r}, v{sb+2*r}, v{sb+2*r+1}")
        a("s_waitcnt lgkmcnt(0)")
    a("v_mov_b32 v5, v6")
    a("v_add_u32 v6, s34, v4")
    a("s_add_u32 s34, s34, 16384")
    a("s_and_b32 s34, s34, 0x1ffff")
    a("s_add_u32 s33, s33, 1")
    a("s_cmp_lt_u32 s33, 16")
    a("s_cbranch_scc1 attn_loop")
    a(f"v_mfma_f32_32x32x16_bf16 {vr(O,16)}, {vr(VF+8+4,4)}, {vr(P+4,4)}, {vr(O,16)}")
    stamp(a)
    vm.reset()
    RES = 16
    a("s_cmp_ge_u32 s13, 28")
    a("s_cbranch_scc1 attn_nopf")
    a("s_and_b32 s28, s13, 3")
    a("s_lshl_b32 s29, s12, 2")
    a("s_add_u32 s28, s28, s29")
    a("s_lshr_b32 s29, s13, 2")
    a("s_mul_i32 s30, s29, %d" % (2 * 32 * 1024))
    a("s_lshl_b32 s31, s3, 13")
    a("s_add_u32 s30, s30, s31")
    a("s_add_u32 s30, s30, 0x%x" % OFF_WO)
    a("s_add_u32 s31, s30, %d" % (32 * 1024))
    for ks in range(8):
        a(f"buffer_load_dwordx4 {ar(8*ks,4)}, v4, s[4:7], s30 offen offset:{(ks%4)*1024}")
        a(f"buffer_load_dwordx4 {ar(8*ks+4,4)}, v4, s[4:7], s31 offen offset:{(ks%4)*1024}")
        if ks == 3:
            a("s_add_u32 s30, s30, 4096"); a("s_add_u32 s31, s31, 4096")
    a.label("attn_nopf")
    a("s_nop 7"); a("s_nop 7")
    a(f"v_mov_b32 v14, v{O+12}")
    a(f"v_mov_b32 v15, v{O+12}")
    a("s_nop 1")
    a("v_permlane32_swap_b32 v14, v15")
    a("s_nop 1")
    a("v_rcp_f32 v10, v15")
    a("s_nop 0")
    for r in range(0, 16, 2):
        a(f"v_pk_mul_f32 v[{O+r}:{O+r+1}], v[{O+r}:{O+r+1}], v[10:11] op_sel_hi:[1,0]")
    for r in range(8):
        a(f"v_cvt_pk_bf16_f32 v{O+r}, v{O+2*r}, v{O+2*r+1}")
    a("s_lshl_b32 s30, s26, 5")
    a("s_lshl_b32 s31, s27, 1")
    a("s_add_u32 s30, s30, s31")
    a("s_lshl_b32 s30, s30, 10")
    a("s_add_u32 s30, s30, s20")
    a(f"buffer_store_dwordx4 v[{O}:{O+3}], v4, s[4:7], s30 offen")
    a(f"buffer_store_dwordx4 v[{O+4}:{O+7}], v4, s[4:7], s30 offen offset:1024")
    local_barrier(a)
    stamp(a)
    a("s_cmp_ge_u32 s13, 28")
    a("s_cbranch_scc1 wo_skip")
    vm.reset()
    gemm_b_body(a, vm, "wo")
    a.label("wo_skip")
    local_barrier(a)
    stamp(a)
    a("s_cmp_ge_u32 s13, 28")
    a("s_cbranch_scc1 ffn1_skip")
    vm.reset()
    ffn1_body(a, vm)
    a.label("ffn1_skip")
    local_barrier(a)
    stamp(a)
    a("s_cmp_ge_u32 s13, 28")
    a("s_cbranch_scc1 ffn2_skip")
    vm.reset()
    gemm_b_body(a, vm, "ffn2")
    a("s_branch ffn2_done")
    a.label("ffn2_skip")
    a("s_cmp_eq_u32 s14, 1")
    a("s_cbranch_scc1 ffn2_done")
    vm.reset()
    wqkv_dma(a, vm)
    a.label("ffn2_done")
    stamp(a)
    a("s_cmp_eq_u32 s14, 1")
    a("s_cbranch_scc1 main_fin")
    local_barrier(a)
    a("s_mov_b32 s14, 1")
    a("s_branch layer_loop")
    a.label("main_fin")
    if STAMP:
        a("s_waitcnt vmcnt(0)")
        stamp(a)
        a("s_lshl_b32 s62, s2, 2")
        a("s_add_u32 s62, s62, s3")
        a("s_lshl_b32 s62, s62, 7")
        a("s_add_u32 s62, s62, 0x%x" % OFF_STAMP)
        a("v_mov_b32 v1, 0")
        for i in range(26):
            a(f"v_mov_b32 v2, s{70+i}")
            a(f"buffer_store_dword v2, v1, s[4:7], s62 offen offset:{4*i}")
            a("s_nop 1")
        a("v_mov_b32 v2, s16")
        a("buffer_store_dword v2, v1, s[4:7], s62 offen offset:104")
    a.label("main_end")
    a("s_endpgm")
    return descriptor(name, 512, 102, 256)

def gemm_b_body(a, vm, kind):
    KS = 32 if kind == "wo" else 112
    KW = KS // 4
    a("s_lshr_b32 s30, s3, 1")
    a("s_lshl_b32 s35, s28, 1")
    a("s_add_u32 s35, s35, s30")
    a("s_and_b32 s30, s3, 1")
    a("s_lshl_b32 s36, s29, 1")
    a("s_add_u32 s36, s36, s30")
    RES, ACC = 16, 32
    if kind == "wo":
        XR, R, TV, BIA = None, 8, 96, None
    else:
        XR, R, TV, BIA = 96, 12, 208, 192
    src = 20 if kind == "wo" else 23
    a("s_mul_i32 s30, s28, %d" % (2 * KS * 1024))
    a("s_mul_i32 s31, s3, %d" % (KW * 1024))
    a("s_add_u32 s30, s30, s31")
    a(f"s_add_u32 s30, s30, s{src}")
    a("s_add_u32 s31, s30, %d" % (KS * 1024))
    def xreg(ks, ti):
        if kind == "wo": return ar(64 + 8 * ks + 4 * ti, 4)
        return vr(XR + (ks % R) * 8 + 4 * ti, 4)
    def wreg(ks, ni):
        return ar(8 * ks + 4 * ni, 4)
    ids = {}
    def issue(ks):
        o = (ks % 4) * 1024
        vm.op(f"buffer_load_dwordx4 {xreg(ks,0)}, v4, s[4:7], s30 offen offset:{o}")
        ids[ks] = vm.op(f"buffer_load_dwordx4 {xreg(ks,1)}, v4, s[4:7], s31 offen offset:{o}")
        if ks % 4 == 3:
            a("s_add_u32 s30, s30, 4096"); a("s_add_u32 s31, s31, 4096")
    for ks in range(min(R, KW)):
        issue(ks)
    resoff = 17 if kind == "wo" else 21
    a("s_mul_i32 s37, s35, 28")
    a("s_lshl_b32 s38, s36, 1")
    a("s_add_u32 s37, s37, s38")
    a("s_lshl_b32 s37, s37, 10")
    a(f"s_add_u32 s38, s37, s{resoff}")
    vm.op(f"buffer_load_dwordx4 v[{RES}:{RES+3}], v4, s[4:7], s38 offen")
    res_last = vm.op(f"buffer_load_dwordx4 v[{RES+4}:{RES+7}], v4, s[4:7], s38 offen offset:1024")
    if kind != "wo":
        a("v_lshlrev_b32 v6, 4, v3")
        a("s_lshl_b32 s38, s36, 7")
        a("s_add_u32 s38, s38, 0x%x" % OFF_B2)
        for g in range(4):
            res_last = vm.op(f"buffer_load_dwordx4 v[{BIA+4*g}:{BIA+4*g+3}], v6, s[4:7], s38 offen offset:{g*32}")
    pf = []
    if kind == "wo":
        a("s_lshr_b32 s44, s13, 1")
        a("s_mul_i32 s44, s44, %d" % (28 * 4096))
        a("s_lshl_b32 s45, s3, 12")
        a("s_add_u32 s44, s44, s45")
        a("s_add_u32 s44, s44, 0x%x" % OFF_W1)
        def mk(c):
            def f():
                a("s_mov_b32 m0, s45")
                a("s_add_u32 s45, s45, 16384")
                for p in range(4):
                    vm.op(f"buffer_load_dwordx4 v4, s[4:7], s44 offen offset:{p*1024} lds")
                a("s_add_u32 s44, s44, 16384")
            return f
        pf = [mk(c) for c in range(7)]
    else:
        a("s_lshr_b32 s44, s13, 1")
        a("s_mul_i32 s44, s44, 86016")
        a("s_mul_i32 s45, s3, 3072")
        a("s_add_u32 s44, s44, s45")
        a("s_add_u32 s44, s44, 0x%x" % OFF_WQKV)
        def mk(c):
            def f():
                a("s_mov_b32 m0, s45")
                a("s_add_u32 s45, s45, 12288")
                for p in range(3):
                    vm.op(f"buffer_load_dwordx4 v4, s[4:7], s44 offen offset:{p*1024} lds")
                a("s_add_u32 s44, s44, 12288")
            return f
        pf = [mk(c) for c in range(7)]
    for r in range(64):
        a(f"v_mov_b32 v{ACC+r}, 0")
    if kind == "wo":
        for f in pf: f()
        pf = []
    for ks in range(KW):
        vm.wait(ids[ks])
        for ti in range(2):
            for ni in range(2):
                acc = vr(ACC + 16 * (2 * ti + ni), 16)
                a(f"v_mfma_f32_32x32x16_bf16 {acc}, {wreg(ks,ni)}, {xreg(ks,ti)}, {acc}")
        if ks + R < KW:
            issue(ks + R)
        elif pf and ks % 2 == 0:
            pf.pop(0)()
    for f in pf: f()
    a("s_nop 7"); a("s_nop 7")
    j = uid("redj")
    labs = [uid("red") for _ in range(4)]
    a("v_add_u32 v5, %d, v4" % RING)
    for w in range(3):
        a(f"s_cmp_eq_u32 s3, {w}")
        a(f"s_cbranch_scc1 {labs[w]}")
    for w in (3, 0, 1, 2):
        if w != 3: a.label(labs[w])
        for d in range(4):
            if d == w: continue
            slot = (w - d - 1) & 3
            for q in range(4):
                b = ACC + 16 * d + 4 * q
                a(f"ds_write_b128 v5, v[{b}:{b+3}] offset:{(d*3+slot)*4096 + q*1024}")
        if w != 0:
            a("s_waitcnt lgkmcnt(0)")
            for r in range(16):
                a(f"v_mov_b32 v{ACC+r}, v{ACC+16*w+r}")
        if w != 2:
            a(f"s_branch {j}")
    a.label(j)
    a("s_mul_i32 s30, s3, %d" % (3 * 4096))
    a("v_add_u32 v5, s30, v5")
    a("s_waitcnt lgkmcnt(0)")
    a("s_barrier")
    T = TV
    for sl in range(3):
        for q in range(4):
            a(f"ds_read_b128 v[{T+16*sl+4*q}:{T+16*sl+4*q+3}], v5 offset:{sl*4096+q*1024}")
    for sl in range(3):
        a(f"s_waitcnt lgkmcnt({(2-sl)*4})")
        for r in range(0, 16, 2):
            a(f"v_pk_add_f32 v[{ACC+r}:{ACC+r+1}], v[{ACC+r}:{ACC+r+1}], v[{T+16*sl+r}:{T+16*sl+r+1}]")
    vm.wait(res_last)
    if kind != "wo":
        for r in range(0, 16, 2):
            a(f"v_pk_add_f32 v[{ACC+r}:{ACC+r+1}], v[{ACC+r}:{ACC+r+1}], v[{BIA+r}:{BIA+r+1}]")
    for q in range(8):
        a(f"v_lshlrev_b32 v{T+2*q}, 16, v{RES+q}")
        a(f"v_and_b32 v{T+2*q+1}, 0xffff0000, v{RES+q}")
    for r in range(0, 16, 2):
        a(f"v_pk_add_f32 v[{ACC+r}:{ACC+r+1}], v[{ACC+r}:{ACC+r+1}], v[{T+r}:{T+r+1}]")
    fin = uid("fin"); endl = uid("bend")
    if kind != "wo":
        a("s_cmp_eq_u32 s14, 1")
        a(f"s_cbranch_scc1 {fin}")
    a(f"v_pk_add_f32 v[{T}:{T+1}], v[{ACC}:{ACC+1}], v[{ACC+2}:{ACC+3}]")
    a(f"v_pk_mul_f32 v[{T+2}:{T+3}], v[{ACC}:{ACC+1}], v[{ACC}:{ACC+1}]")
    a(f"v_pk_fma_f32 v[{T+2}:{T+3}], v[{ACC+2}:{ACC+3}], v[{ACC+2}:{ACC+3}], v[{T+2}:{T+3}]")
    for r in range(4, 16, 2):
        a(f"v_pk_add_f32 v[{T}:{T+1}], v[{T}:{T+1}], v[{ACC+r}:{ACC+r+1}]")
        a(f"v_pk_fma_f32 v[{T+2}:{T+3}], v[{ACC+r}:{ACC+r+1}], v[{ACC+r}:{ACC+r+1}], v[{T+2}:{T+3}]")
    a(f"v_add_f32 v{T+4}, v{T}, v{T+1}")
    a(f"v_add_f32 v{T+5}, v{T+2}, v{T+3}")
    a(f"v_mov_b32 v{T+6}, v{T+4}")
    a(f"v_mov_b32 v{T+7}, v{T+5}")
    for r in range(8):
        a(f"v_cvt_pk_bf16_f32 v{ACC+r}, v{ACC+2*r}, v{ACC+2*r+1}")
    xo = 21 if kind == "wo" else 24
    a(f"s_add_u32 s38, s37, s{xo}")
    a(f"buffer_store_dwordx4 v[{ACC}:{ACC+3}], v4, s[4:7], s38 offen")
    a(f"buffer_store_dwordx4 v[{ACC+4}:{ACC+7}], v4, s[4:7], s38 offen offset:1024")
    a(f"v_permlane32_swap_b32 v{T+4}, v{T+6}")
    a(f"v_permlane32_swap_b32 v{T+5}, v{T+7}")
    a("v_lshlrev_b32 v5, 3, v2")
    a("s_lshl_b32 s38, s36, 14")
    a("s_lshl_b32 s39, s35, 8")
    a("s_add_u32 s38, s38, s39")
    so = 22 if kind == "wo" else 25
    a(f"s_add_u32 s38, s38, s{so}")
    a(f"v_add_f32 v{T+4}, v{T+4}, v{T+6}")
    a(f"v_add_f32 v{T+5}, v{T+5}, v{T+7}")
    a(f"buffer_store_dwordx2 v[{T+4}:{T+5}], v5, s[4:7], s38 offen")
    if kind != "wo":
        a(f"s_branch {endl}")
        a.label(fin)
        for r in range(8):
            a(f"v_cvt_pk_bf16_f32 v{ACC+r}, v{ACC+2*r}, v{ACC+2*r+1}")
        a("v_mul_u32_u24 v5, 896, v2")
        a("v_lshl_add_u32 v5, v3, 3, v5")
        a("s_mul_i32 s38, s35, %d" % (32 * 896))
        a("s_lshl_b32 s39, s36, 6")
        a("s_add_u32 s38, s38, s39")
        for i in range(4):
            a(f"buffer_store_dwordx2 v[{ACC+2*i}:{ACC+2*i+1}], v5, s[8:11], s38 offen offset:{16*i}")
        a.label(endl)

def ffn1_body(a, vm):
    XF, ACC, WF, ST = 16, 128, 192, 240
    a("s_mul_i32 s30, s26, %d" % (28 * 1024))
    a("s_add_u32 s30, s30, s21")
    xid = []
    for ks in range(28):
        xid.append(vm.op(f"buffer_load_dwordx4 v[{XF+4*ks}:{XF+4*ks+3}], v4, s[4:7], s30 offen offset:{(ks%4)*1024}"))
        if ks % 4 == 3 and ks < 27: a("s_add_u32 s30, s30, 4096")
    st_last = stats_issue(a, vm, ST, 26, 22, 5, 31)
    a("s_mul_i32 s44, s29, %d" % (2 * 112 * 1024))
    a("s_mul_i32 s45, s3, %d" % (28 * 1024))
    a("s_add_u32 s44, s44, s45")
    a("s_add_u32 s44, s44, 0x%x" % OFF_W2)
    a("s_add_u32 s45, s44, %d" % (112 * 1024))
    def w2(ks):
        o = (ks % 4) * 1024
        vm.op(f"buffer_load_dwordx4 {ar(8*ks,4)}, v4, s[4:7], s44 offen offset:{o}")
        vm.op(f"buffer_load_dwordx4 {ar(8*ks+4,4)}, v4, s[4:7], s45 offen offset:{o}")
        if ks % 4 == 3:
            a("s_add_u32 s44, s44, 4096"); a("s_add_u32 s45, s45, 4096")
    a("v_lshlrev_b32 v6, 4, v3")
    a("s_lshl_b32 s46, s27, 9")
    a("s_add_u32 s47, s46, 0x%x" % OFF_B1)
    a("s_add_u32 s46, s46, 0x%x" % OFF_CS1)
    for r in range(64):
        a(f"v_mov_b32 v{ACC+r}, 0")
    a("v_add_u32 v8, 0x10000, v4")
    def rdW(ks):
        for p in range(4):
            off = (ks * 4 + p) * 1024
            areg = "v4" if off < 65536 else "v8"
            b = WF + (ks % 3) * 16 + 4 * p
            a(f"ds_read_b128 v[{b}:{b+3}], {areg} offset:{off & 0xffff}")
    CB = {0: (XF, XF + 16), 1: (XF + 32, XF + 48), 2: (XF + 64, XF + 80), 3: (XF + 96, WF + 16)}
    cb_last = {}
    def ldcb(nt, which):
        dst = CB[nt][which]; s = 46 if which == 0 else 47
        for g in range(4):
            cb_last[nt] = vm.op(f"buffer_load_dwordx4 v[{dst+4*g}:{dst+4*g+3}], v6, s[4:7], s{s} offen offset:{nt*128+g*32}")
    rdW(0); rdW(1)
    for ks in range(28):
        if ks + 2 < 28: rdW(ks + 2)
        nl = min(2, 27 - ks) * 4
        vm.wait(xid[ks])
        a(f"s_waitcnt lgkmcnt({nl})")
        for p in range(4):
            w = vr(WF + (ks % 3) * 16 + 4 * p, 4); x = vr(XF + 4 * ks, 4); acc = vr(ACC + 16 * p, 16)
            a(f"v_mfma_f32_32x32x16_bf16 {acc}, {w}, {x}, {acc}")
        w2(ks)
        if ks == 8: ldcb(0, 0); ldcb(0, 1)
        if ks == 16: ldcb(1, 0); ldcb(1, 1)
        if ks == 24: ldcb(2, 0); ldcb(2, 1)
    ldcb(3, 0); ldcb(3, 1)
    stamp_inner = None
    NM, RS = 10, 12
    vm.wait(st_last)
    G1.stats_finish(a, ST, NM, RS, 14, 15)
    c1 = -2.0 * math.sqrt(2.0 / math.pi) * math.log2(math.e)
    c2 = c1 * 0.044715
    a(f"v_mul_f32 v14, v{NM}, v{RS}")
    a("s_mov_b32 s48, 0x%x" % f32(c2))
    a("s_mov_b32 s49, 0x%x" % f32(c2))
    a("v_mov_b32 v240, 0x%x" % f32(c1))
    a("v_mov_b32 v241, 0x%x" % f32(c1))
    a("s_mul_i32 s30, s26, 112")
    a("s_lshl_b32 s31, s27, 3")
    a("s_add_u32 s30, s30, s31")
    a("s_lshl_b32 s30, s30, 10")
    a("s_add_u32 s30, s30, s23")
    T0 = WF + 32
    for nt in range(4):
        acc = ACC + 16 * nt
        cs, bb = CB[nt]
        vm.wait(cb_last[nt])
        for r in range(0, 16, 2):
            a(f"v_pk_fma_f32 v[{bb+r}:{bb+r+1}], v[{cs+r}:{cs+r+1}], v[14:15], v[{bb+r}:{bb+r+1}] op_sel_hi:[1,0,1]")
        for r in range(0, 16, 2):
            a(f"v_pk_fma_f32 v[{acc+r}:{acc+r+1}], v[{acc+r}:{acc+r+1}], v[{RS}:{RS+1}], v[{bb+r}:{bb+r+1}] op_sel_hi:[1,0,1]")
        for r in range(0, 16, 2):
            a(f"v_pk_mul_f32 v[{T0+r}:{T0+r+1}], v[{acc+r}:{acc+r+1}], v[{acc+r}:{acc+r+1}]")
        for r in range(0, 16, 2):
            a(f"v_pk_fma_f32 v[{T0+r}:{T0+r+1}], v[{T0+r}:{T0+r+1}], s[48:49], v[240:241]")
        for r in range(0, 16, 2):
            a(f"v_pk_mul_f32 v[{T0+r}:{T0+r+1}], v[{T0+r}:{T0+r+1}], v[{acc+r}:{acc+r+1}]")
        for r in range(16):
            a(f"v_exp_f32 v{T0+r}, v{T0+r}")
        for r in range(0, 16, 2):
            a(f"v_pk_add_f32 v[{T0+r}:{T0+r+1}], v[{T0+r}:{T0+r+1}], 1.0 op_sel_hi:[1,0]")
        for r in range(16):
            a(f"v_rcp_f32 v{T0+r}, v{T0+r}")
        for r in range(0, 16, 2):
            a(f"v_pk_mul_f32 v[{acc+r}:{acc+r+1}], v[{acc+r}:{acc+r+1}], v[{T0+r}:{T0+r+1}]")
        for r in range(8):
            a(f"v_cvt_pk_bf16_f32 v{acc+r}, v{acc+2*r}, v{acc+2*r+1}")
        if nt == 2:
            a("s_add_u32 s30, s30, 4096")
        o = (nt & 1) * 2048
        vm.op(f"buffer_store_dwordx4 v[{acc}:{acc+3}], v4, s[4:7], s30 offen offset:{o}")
        vm.op(f"buffer_store_dwordx4 v[{acc+4}:{acc+7}], v4, s[4:7], s30 offen offset:{o+1024}")

def gen_prep2(a):
    G1.OFF_X = OFF_X; G1.OFF_STA = OFF_ST; G1.WS_USED = WS_USED
    G1.STAMP = False
    return G1.gen_prep(a, zero_flags=(OFF_FL, 0x4000))

def main(out_path):
    a = Asm()
    hdr = open("cdna_kernels/%s.s.ref" % NAME).read().split("\n")
    head = [l for l in hdr if l.startswith(";") and "@launch" not in l and "Override" not in l and "grid=ceil" not in l]
    head = head[:head.index([l for l in head if "offset  80" in l][0]) + 1]
    launches = [("prep_kernel", 256, 256, 1024), ("main_kernel", 256, 256, LDS_BYTES)]
    txt = "\n".join(head) + "\n"
    for (k, g, b, l) in launches:
        txt += f"; @launch kernel={k} grid=({g},1,1) block=({b},1,1) lds={l}\n"
    a.raw('.amdgcn_target "amdgcn-amd-amdhsa--gfx950"')
    a.raw(".text")
    descs = [gen_prep2(a), gen_main(a)]
    txt += a.text()
    txt += '.section .rodata,"a"\n' + "".join(descs)
    open(out_path, "w").write(txt)

if __name__ == "__main__":
    main(sys.argv[1] if len(sys.argv) > 1 else "cdna_kernels/%s.s" % NAME)
```
